```python
import torch

def _softmax(x, axis=-1):
    return torch.softmax(x, dim=axis)
def _gelu(x):
    return torch.nn.functional.gelu(x, approximate="tanh")
def _silu(x):
    return torch.nn.functional.silu(x)
def _sigmoid(x):
    return torch.sigmoid(x)
def _layernorm(x, axis=-1, eps=1e-5):
    m = x.mean(dim=axis, keepdim=True)
    v = x.var(dim=axis, keepdim=True, unbiased=False)
    return (x - m) / torch.sqrt(v + eps)
def _scatter_add(tgt, idx, src, axis=0):
    return tgt.clone().index_add_(axis, idx, src)
def _segment_sum(src, seg, n):
    out = torch.zeros((n,) + src.shape[1:], dtype=src.dtype)
    return out.index_add_(0, seg, src)
def _pad(x, pw):
    flat = tuple(v for pair in reversed(pw) for v in pair)
    return torch.nn.functional.pad(x, flat)

kernel_name = 'recurrent_scan__compressed_kv_cla__dense_activation_mish__prompt'

def setup_inputs():

    _w = (lambda a: (lambda t: t.to(torch.bfloat16) if t.is_floating_point() else t)(torch.as_tensor(a)))
    def _A_setup():
        B, H, Sq, Sk, D, M = 1, 32, 2048, 2048, 128, 640
        Dc = 4 * D
        return {
            "x": _w((lambda *s: torch.randn(*s, dtype=torch.bfloat16) * 0.05)(B, Sq, M)),
            "c_kv": _w((lambda *s: torch.randn(*s, dtype=torch.bfloat16) * 0.8)(B, Sk, Dc)),
            "w_q": _w((lambda *s: torch.randn(*s, dtype=torch.bfloat16) * 1.6)(M, H, D) * (M ** -0.5)),
            "w_uk": _w((lambda *s: torch.randn(*s, dtype=torch.bfloat16) * 1.6)(Dc, H, D) * (Dc ** -0.5)),
            "w_uv": _w((lambda *s: torch.randn(*s, dtype=torch.bfloat16) * 0.8)(Dc, H, D) * (Dc ** -0.5)),
            "w_o": _w((lambda *s: torch.randn(*s, dtype=torch.bfloat16) * 0.8)(H, D, M) * ((H * D) ** -0.5)),
        }
    _A_in = _A_setup()

    def _B_setup():
        B, S, D, F = 1, 2048, 640, 1728
        return {
            "x": _w((lambda *s: torch.randn(*s, dtype=torch.bfloat16) * 0.05)(B, S, D)),
            "w1": _w((lambda *s: torch.randn(*s, dtype=torch.bfloat16) * 0.8)(D, F) * (D ** -0.5)),
            "b1": _w((lambda *s: torch.randn(*s, dtype=torch.bfloat16) * 0.8)(F)),
            "w2": _w((lambda *s: torch.randn(*s, dtype=torch.bfloat16) * 0.2)(F, D) * (F ** -0.5)),
        }
    _B_in = _B_setup()

    return {
        "A_x": _A_in["x"],
        "A_c_kv": _A_in["c_kv"],
        "A_w_q": _A_in["w_q"],
        "A_w_uk": _A_in["w_uk"],
        "A_w_uv": _A_in["w_uv"],
        "A_w_o": _A_in["w_o"],
        "B_x": _B_in["x"],
        "B_w1": _B_in["w1"],
        "B_b1": _B_in["b1"],
        "B_w2": _B_in["w2"],
    }

def reference(A_x, A_c_kv, A_w_q, A_w_uk, A_w_uv, A_w_o, B_x, B_w1, B_b1, B_w2):
    def _A_ref(x, c_kv, w_q, w_uk, w_uv, w_o):
        B, Sq, M = x.shape[0], x.shape[1], x.shape[2]
        Sk = c_kv.shape[1]
        H, D = w_q.shape[1], w_q.shape[2]
        q = torch.einsum("bqm,mhd->bhqd", x, w_q)
        k = torch.einsum("bkc,chd->bhkd", c_kv, w_uk)
        v = torch.einsum("bkc,chd->bhkd", c_kv, w_uv)
        scores = torch.einsum("bhqd,bhkd->bhqk", q, k) * (D ** -0.5)
        off = Sk - Sq
        qi = torch.arange(Sq)[:, None]
        kj = torch.arange(Sk)[None, :]
        cmask = kj <= (qi + off)
        scores = torch.where(cmask[None, None], scores, -1e9)
        p = _softmax(scores, axis=-1)
        ctx = torch.einsum("bhqk,bhkd->bhqd", p, v)
        return torch.einsum("bhqd,hdm->bqm", ctx, w_o)

    def _B_ref(x, w1, b1, w2):
        h = torch.einsum("bsd,df->bsf", x, w1) + b1
        sp = torch.log1p(torch.exp(-torch.abs(h))) + torch.where(h > 0, h, torch.zeros_like(h))
        act = h * torch.tanh(sp)
        return torch.einsum("bsf,fd->bsd", act, w2)

    x = A_x
    xn = _layernorm(x, axis=-1)
    s = _A_ref(xn, A_c_kv, A_w_q, A_w_uk, A_w_uv, A_w_o)
    g = _silu(_B_ref(xn, B_w1, B_b1, B_w2))
    return x + s * g
```

```python
class Asm:
    def __init__(self):
        self.lines = []
        self._lab = 0
    def e(self, s):
        self.lines.append("    " + s)
    def c(self, s):
        self.lines.append("    ; " + s)
    def raw(self, s):
        self.lines.append(s)
    def label(self, name):
        self.lines.append(name + ":")
    def newlabel(self, base="L"):
        self._lab += 1
        return f"{base}_{self._lab}"
    def text(self):
        return "\n".join(self.lines) + "\n"


def vr(base, n=1):
    return f"v{base}" if n == 1 else f"v[{base}:{base+n-1}]"
def ar(base, n=1):
    return f"a{base}" if n == 1 else f"a[{base}:{base+n-1}]"
def sr(base, n=1):
    return f"s{base}" if n == 1 else f"s[{base}:{base+n-1}]"


def kernel_begin(a, name):
    a.raw(".text")
    a.raw(f".globl {name}")
    a.raw(".p2align 8")
    a.raw(f".type {name},@function")
    a.raw(f"{name}:")


def kernel_desc(a, name, vgpr, sgpr=102, accum=None, wgy=False):
    if accum is None:
        accum = min(256, (vgpr + 3) // 4 * 4)
    a.raw('.section .rodata,"a"')
    a.raw(".p2align 6")
    a.raw(f".amdhsa_kernel {name}")
    a.raw(f"  .amdhsa_next_free_vgpr {vgpr}")
    a.raw(f"  .amdhsa_next_free_sgpr {sgpr}")
    a.raw(f"  .amdhsa_accum_offset {accum}")
    a.raw("  .amdhsa_group_segment_fixed_size 0")
    a.raw("  .amdhsa_kernarg_size 104")
    a.raw("  .amdhsa_user_sgpr_count 2")
    a.raw("  .amdhsa_user_sgpr_kernarg_segment_ptr 1")
    a.raw("  .amdhsa_system_sgpr_workgroup_id_x 1")
    if wgy:
        a.raw("  .amdhsa_system_sgpr_workgroup_id_y 1")
    a.raw(".end_amdhsa_kernel")
```

```python
from asmlib import *
from layout import *

class OpQ:
    def __init__(self):
        self.q = []
    def issue(self, tag):
        self.q.append(tag)
    def need(self, tag):
        if tag not in self.q:
            return None
        i = len(self.q) - 1 - self.q[::-1].index(tag)
        n = len(self.q) - 1 - i
        self.q = self.q[i + 1:]
        return n
    def drain(self):
        self.q = []


def MF(d, x, y, c):
    cs = c if isinstance(c, str) else vr(c, 4)
    return f"v_mfma_f32_16x16x32_bf16 {vr(d,4)}, {vr(x,4)}, {vr(y,4)}, {cs}"


def srd_from(a, d, ptr, const=0, off_s=None, size=0):
    if const:
        a.e(f"s_add_u32 s{d}, s{ptr}, {const}")
        a.e(f"s_addc_u32 s{d+1}, s{ptr+1}, 0")
    else:
        a.e(f"s_mov_b32 s{d}, s{ptr}")
        a.e(f"s_mov_b32 s{d+1}, s{ptr+1}")
    if off_s is not None:
        a.e(f"s_add_u32 s{d}, s{d}, s{off_s}")
        a.e(f"s_addc_u32 s{d+1}, s{d+1}, 0")
    a.e(f"s_and_b32 s{d+1}, s{d+1}, 0xffff")
    a.e(f"s_mov_b32 s{d+2}, {size}")
    a.e(f"s_mov_b32 s{d+3}, 0x20000")


def stamp_begin(a):
    a.e("s_memtime s[90:91]")
    a.e("s_memrealtime s[92:93]")


def stamp_end(a, ws, wv, kidx, srd=96, tmp=94):
    a.e("s_memtime s[84:85]")
    a.e("s_memrealtime s[86:87]")
    a.e("s_waitcnt lgkmcnt(0)")
    a.e("s_sub_u32 s84, s84, s90")
    a.e("s_sub_u32 s86, s86, s92")
    a.e("v_mov_b32 v4, s84")
    a.e("v_mov_b32 v5, s86")
    a.e("v_mov_b32 v6, s92")
    a.e("v_mov_b32 v7, 0")
    srd_from(a, srd, ws, 100 * MB + kidx * (1 << 20), None, 1 << 20)
    a.e(f"s_lshl_b32 s{tmp}, s2, 3")
    a.e(f"s_add_u32 s{tmp}, s{tmp}, s{wv}")
    a.e(f"s_lshl_b32 s{tmp}, s{tmp}, 4")
    a.e("v_mov_b32 v8, 0")
    a.e(f"buffer_store_dwordx4 v[4:7], v8, {sr(srd,4)}, s{tmp} offen")


def stamp_mid(a, k):
    a.e(f"s_memtime s[{66+2*k}:{67+2*k}]")
    a.e("s_waitcnt lgkmcnt(0)")


def stamp_dump(a, n, srd=96, tmp=94):
    a.e(f"s_lshl_b32 s{tmp}, s{tmp}, 2")
    a.e(f"s_add_u32 s{tmp}, s{tmp}, 65536")
    for k in range(n):
        a.e(f"s_sub_u32 s{66+2*k}, s{66+2*k}, s90")
        a.e(f"v_mov_b32 v{12+k}, s{66+2*k}")
    for k in range((n + 3) // 4):
        a.e(f"buffer_store_dwordx4 v[{12+4*k}:{15+4*k}], v8, {sr(srd,4)}, s{tmp} offen offset:{16*k}")
```

```python
from asmlib import *
from layout import *

LDS_K = 0
LDS_V = 49152
LDS_PARK = 114688
LDS_SPARE = 147456
LDS_TOTAL = 163840

S_KSRD, S_VSRD, S_CSRD, S_QSRD = 4, 8, 12, 16
S_HEAD, S_PAIR, S_WV, S_W, S_G = 20, 21, 22, 23, 24
S_KCUR, S_VCUR, S_KWRAP, S_VWRAP = 25, 26, 27, 28
S_KDST, S_VDST, S_KRD, S_VRD = 29, 30, 31, 32
S_CNT, S_D, S_QB, S_PASS = 33, 34, 35, 36
S_THR, S_T0, S_T1, S_T2 = 37, 38, 39, 40
S_KDSTEND, S_XOUT, S_XIN, S_CSOFF = 41, 42, 43, 44
S_M = [46, 48, 50, 52]
S_WS = 54
S_KDST0, S_VDST0 = 56, 57

V_L16 = 1
V_KA = 2
V_VA0 = 3
V_VA1 = 4
V_KB = 5
V_VB0 = 6
V_VB1 = 7
V_MB = 8
V_NINF = 9
V_M = [10, 12]
V_L = [11, 13]
V_LS = [14, 15]
V_T0, V_T1, V_T2, V_T3 = 16, 17, 18, 19
V_E = 20
V_CK = 28
V_FR = 32
V_O = 64
V_Q = 128
V_C = 160
V_S = [176, 192]
V_P = [208, 216]


class LdsQ:
    def __init__(self):
        self.q = []
    def issue(self, tag):
        self.q.append(tag)
    def need(self, tag):
        if tag not in self.q:
            return None
        i = self.q.index(tag)
        n = len(self.q) - 1 - i
        self.q = self.q[i + 1:]
        return n
    def drain(self):
        self.q = []


def MF(d, x, y, c):
    cs = c if isinstance(c, str) else vr(c, 4)
    return f"v_mfma_f32_16x16x32_bf16 {vr(d,4)}, {vr(x,4)}, {vr(y,4)}, {cs}"


class AttnGen:
    def __init__(self, a, D=4, opts=None):
        self.a = a
        self.D = D
        self.q = LdsQ()
        self.ool = []
        self.o = dict(dma=True, barrier=True, valu=True, reads=True, check=True, spread=True)
        if opts:
            self.o.update(opts)

    def frag(self, slot):
        return V_FR + 4 * (slot % self.D)

    def read_frag(self, kind, idx, slot):
        a = self.a
        if not self.o["reads"]:
            return
        if kind == "K":
            a.e(f"ds_read_b128 {vr(self.frag(slot),4)}, v{V_KA} offset:{idx*1024}")
        else:
            base = V_VA0 if idx < 4 else V_VA1
            a.e(f"ds_read_b128 {vr(self.frag(slot),4)}, v{base} offset:{idx*1024}")
        self.q.issue((kind, idx))

    def adv_k_read(self):
        a = self.a
        a.e(f"s_add_u32 s{S_KRD}, s{S_KRD}, 16384")
        a.e(f"s_cmp_eq_u32 s{S_KRD}, 49152")
        a.e(f"s_cselect_b32 s{S_KRD}, 0, s{S_KRD}")
        a.e(f"v_add_u32 v{V_KA}, s{S_KRD}, v{V_KB}")

    def adv_v_read(self):
        a = self.a
        a.e(f"s_add_u32 s{S_VRD}, s{S_VRD}, 16384")
        a.e(f"s_and_b32 s{S_VRD}, s{S_VRD}, 0xffff")
        a.e(f"v_add_u32 v{V_VA0}, s{S_VRD}, v{V_VB0}")
        a.e(f"v_add_u32 v{V_VA1}, s{S_VRD}, v{V_VB1}")

    def dma_k(self):
        g0 = [f"s_mov_b32 m0, s{S_KDST}",
              f"s_add_u32 s{S_KDST}, s{S_KDST}, 16384",
              f"buffer_load_dwordx4 v{V_L16}, {sr(S_KSRD,4)}, s{S_KCUR} offen lds"]
        g1 = [f"buffer_load_dwordx4 v{V_L16}, {sr(S_KSRD,4)}, s{S_KCUR} offen offset:1024 lds",
              f"s_cmp_eq_u32 s{S_KDST}, s{S_KDSTEND}",
              f"s_cselect_b32 s{S_KDST}, s{S_KDST0}, s{S_KDST}",
              f"s_add_u32 s{S_KCUR}, s{S_KCUR}, 16384",
              f"s_cmp_eq_u32 s{S_KCUR}, s{S_KWRAP}",
              f"s_cselect_b32 s{S_KCUR}, s{S_T2}, s{S_KCUR}"]
        return [g0, g1]

    def dma_v(self):
        g0 = [f"s_add_u32 m0, s{S_VDST}, s{S_VDST0}",
              f"s_add_u32 s{S_VDST}, s{S_VDST}, 16384",
              f"buffer_load_dwordx4 v{V_L16}, {sr(S_VSRD,4)}, s{S_VCUR} offen lds"]
        g1 = [f"buffer_load_dwordx4 v{V_L16}, {sr(S_VSRD,4)}, s{S_VCUR} offen offset:1024 lds",
              f"s_and_b32 s{S_VDST}, s{S_VDST}, 0xffff",
              f"s_add_u32 s{S_VCUR}, s{S_VCUR}, 16384",
              f"s_cmp_eq_u32 s{S_VCUR}, s{S_VWRAP}",
              f"s_cselect_b32 s{S_VCUR}, s{S_T2}, s{S_VCUR}"]
        return [g0, g1]

    def sreg(self, par, u, e):
        return V_S[par] + ((e >> 2) * 2 + u) * 4 + (e & 3)

    def sm_ops(self, par):
        P = V_P[par]
        NT = 8
        def t(i): return V_E + (i % NT)
        exps = []
        plains = []
        for i in range(16):
            u, e = i >> 3, i & 7
            exps.append(f"v_exp_f32 v{t(i)}, v{self.sreg(par,u,e)}")
            if i & 1:
                j = i - 1
                if e == 1:
                    plains.append((i, f"v_add_f32 v{V_LS[u]}, v{t(j)}, v{t(i)}"))
                else:
                    plains.append((j, f"v_add_f32 v{V_LS[u]}, v{V_LS[u]}, v{t(j)}"))
                    plains.append((i, f"v_add_f32 v{V_LS[u]}, v{V_LS[u]}, v{t(i)}"))
                plains.append((i, f"v_cvt_pk_bf16_f32 v{P+u*4+(e>>1)}, v{t(j)}, v{t(i)}"))
        plains.append((15, f"v_add_f32 v{V_CK}, v{V_LS[0]}, v{V_LS[1]}"))
        return exps, plains

    def sm_linear(self, par):
        exps, plains = self.sm_ops(par)
        out = []
        k = 0
        for i, e in enumerate(exps):
            out.append(e)
            while k < len(plains) and plains[k][0] <= i - 1:
                out.append(plains[k][1]); k += 1
        out.append("s_nop 0")
        while k < len(plains):
            out.append(plains[k][1]); k += 1
        return out

    def mask_block(self, par):
        a = self.a
        a.e(f"v_add_u32 v{V_T0}, s{S_D}, v{V_MB}")
        for r in range(16 + 3):
            if r < 16:
                aa, u, rr = r >> 3, (r >> 2) & 1, r & 3
                cst = 16 * (aa - u) + rr
                a.e(f"v_cmp_le_i32 {sr(S_M[r%4],2)}, {cst}, v{V_T0}")
            else:
                a.e("s_nop 0")
            if r >= 3:
                x = V_S[par] + r - 3
                a.e(f"v_cndmask_b32 v{x}, v{V_NINF}, v{x}, {sr(S_M[(r-3)%4],2)}")

    def xlane(self, op, regs, tmps):
        a = self.a
        for sw in ("v_permlane16_swap_b32", "v_permlane32_swap_b32"):
            for r, t in zip(regs, tmps):
                a.e(f"v_mov_b32 v{t}, v{r}")
            a.e("s_nop 1")
            for r, t in zip(regs, tmps):
                a.e(f"{sw} v{r}, v{t}")
            a.e("s_nop 1")
            for r, t in zip(regs, tmps):
                a.e(f"{op} v{r}, v{r}, v{t}")

    def rare_block(self, par, has_next, first):
        a = self.a
        a.e("s_nop 7")
        d = [V_T0, V_T1]; f = [V_T2, V_T3]
        for u in range(2):
            s = lambda e: self.sreg(par, u, e)
            a.e(f"v_max3_f32 v{d[u]}, v{s(0)}, v{s(1)}, v{s(2)}")
            a.e(f"v_max3_f32 v{d[u]}, v{d[u]}, v{s(3)}, v{s(4)}")
            a.e(f"v_max3_f32 v{d[u]}, v{d[u]}, v{s(5)}, v{s(6)}")
            a.e(f"v_max_f32 v{d[u]}, v{d[u]}, v{s(7)}")
        self.xlane("v_max_f32", d, f)
        for u in range(2):
            if first:
                a.e(f"v_max_f32 v{d[u]}, 0xf1800000, v{d[u]}")
                a.e(f"v_mov_b32 v{V_M[u]}, v{d[u]}")
            else:
                a.e(f"v_max_f32 v{d[u]}, 0, v{d[u]}")
                a.e(f"v_add_f32 v{V_M[u]}, v{V_M[u]}, v{d[u]}")
                a.e(f"v_exp_f32 v{f[u]}, -v{d[u]}")
        for u in range(2):
            for i in range(4):
                a.e(f"v_sub_f32 v{V_C+4*u+i}, 0, v{V_M[u]}")
        for u in range(2):
            for e in range(8):
                x = self.sreg(par, u, e)
                a.e(f"v_sub_f32 v{x}, v{x}, v{d[u]}")
            if has_next:
                for e in range(8):
                    x = self.sreg(par ^ 1, u, e)
                    a.e(f"v_sub_f32 v{x}, v{x}, v{d[u]}")
        if not first:
            for u in range(2):
                a.e(f"v_mul_f32 v{V_L[u]}, v{V_L[u]}, v{f[u]}")
            for i in range(64):
                u = (i >> 2) & 1
                a.e(f"v_mul_f32 v{V_O+i}, v{V_O+i}, v{f[u]}")
            for s in self.sm_linear(par):
                a.e(s)
        a.e("s_nop 1")

    def iteration(self, qk, sm, pv, par, nxt, dk, dv, vm, first=False, lgkm_before_bar=False, name="", extra=None):
        a = self.a; D = self.D; o = self.o
        a.c(f"==== iteration {name} qk={qk} sm={sm} pv={pv} par={par}")
        slots = []
        if qk:
            slots += [("K", s) for s in range(8)]
        if pv:
            slots += [("V", i) for i in range(8)]
        n = len(slots)
        nxt_slots = [(nxt, i) for i in range(D)] if nxt else []
        allslots = slots + nxt_slots
        for i in range(min(D, n)):
            if slots[i] not in self.q.q or self._stale:
                if slots[i] == ("V", 0):
                    self.adv_v_read()
                if slots[i] == ("K", 0):
                    self.adv_k_read()
                self.read_frag(slots[i][0], slots[i][1], i)
        self._stale = False
        if sm:
            lm = a.newlabel("L_mask"); lb = a.newlabel("L_maskback")
            a.e(f"s_cmp_lt_i32 s{S_D}, 32")
            a.e(f"s_cbranch_scc1 {lm}")
            a.label(lb)
            def blk(lm=lm, lb=lb, par=par):
                a.label(lm)
                self.mask_block(par)
                a.e(f"s_branch {lb}")
            self.ool.append(blk)
        ng = 2 * n
        gaps = [[] for _ in range(ng)]
        if sm and o["valu"]:
            exps, plains = self.sm_ops(par)
            if n == 16:
                egap = [2 * i if i < 14 else 2 * i - 1 for i in range(16)]
                egap = []
                g = 0
                order = [0, 1, 2] + [2 * k for k in range(2, 15)]
                egap = order
                for i, e in enumerate(exps):
                    gaps[egap[i]].append(e)
                k = 0
                for g in range(3, ng):
                    if gaps[g]:
                        continue
                    cnt = 0
                    while k < len(plains) and cnt < 2 and egap[plains[k][0]] < g:
                        gaps[g].append(plains[k][1]); k += 1; cnt += 1
                while k < len(plains):
                    gaps[ng - 1].append(plains[k][1]); k += 1
            else:
                seq = self.sm_linear(par)
                for k, s in enumerate(seq):
                    gaps[min(ng - 1, k * ng // len(seq))].append(s)
        if extra:
            for k, s in enumerate(extra):
                gaps[min(ng - 1, k * ng // len(extra))].append(s)
        dmas = []
        if o["dma"]:
            if dk: dmas += self.dma_k()
            if dv: dmas += self.dma_v()
        barslot = n - D
        Sd = V_S[par ^ 1] if not first else V_S[0]
        for i in range(n):
            kind, idx = slots[i]
            if i == barslot:
                if lgkm_before_bar:
                    a.e("s_waitcnt lgkmcnt(0)")
                    self.q.drain()
                if o["barrier"]:
                    if o["dma"]:
                        a.e(f"s_waitcnt vmcnt({vm})")
                    a.e("s_barrier")
            w = self.q.need((kind, idx))
            if w is not None:
                a.e(f"s_waitcnt lgkmcnt({w})")
            f = self.frag(i)
            for u in range(2):
                if kind == "K":
                    aa, s = idx >> 2, idx & 3
                    d = Sd + (aa * 2 + u) * 4
                    c = d if s > 0 else ("0" if first else V_C + 4 * u)
                    a.e(MF(d, f, V_Q + (u * 4 + s) * 4, c))
                else:
                    d = V_O + (idx * 2 + u) * 4
                    a.e(MF(d, f, V_P[par ^ 1] + 4 * u, d))
                if u == 1:
                    if i + D < len(allslots):
                        k2, i2 = allslots[i + D]
                        if (k2, i2) == ("V", 0):
                            self.adv_v_read()
                        if (k2, i2) == ("K", 0):
                            self.adv_k_read()
                        self.read_frag(k2, i2, i + D)
                    if i >= barslot and dmas:
                        for s_ in dmas.pop(0):
                            a.e(s_)
                for s_ in gaps[2 * i + u]:
                    a.e(s_)
        for g in dmas:
            for s_ in g:
                a.e(s_)
        if sm:
            lr = a.newlabel("L_rare"); lb = a.newlabel("L_rareback")
            if o["check"]:
                a.e(f"v_cmp_nge_f32 vcc, s{S_THR}, v{V_CK}")
                a.e(f"s_sub_u32 s{S_D}, s{S_D}, 64")
                a.e(f"s_cbranch_vccnz {lr}")
            else:
                a.e(f"s_sub_u32 s{S_D}, s{S_D}, 64")
            a.label(lb)
            a.e(f"v_add_f32 v{V_L[0]}, v{V_L[0]}, v{V_LS[0]}")
            a.e(f"v_add_f32 v{V_L[1]}, v{V_L[1]}, v{V_LS[1]}")
            def blk(lr=lr, lb=lb, par=par, qk=qk):
                a.label(lr)
                self.rare_block(par, qk, False)
                a.e(f"s_branch {lb}")
            self.ool.append(blk)

    def stamp(self, k):
        a = self.a
        if not self.o.get("stamp"):
            return
        l1 = a.newlabel("L_st"); l2 = a.newlabel("L_st")
        a.e(f"s_cmp_eq_u32 s{S_PASS}, 0")
        a.e(f"s_cbranch_scc0 {l1}")
        a.e(f"s_memtime s[{76+2*k}:{77+2*k}]")
        a.e(f"s_branch {l2}")
        a.label(l1)
        a.e(f"s_memtime s[{86+2*k}:{87+2*k}]")
        a.label(l2)
        a.e("s_waitcnt lgkmcnt(0)")

    def qblock(self):
        a = self.a; D = self.D
        self._stale = True
        a.e("s_waitcnt vmcnt(8)")
        a.e("s_barrier")
        a.label(self.lq2)
        self.stamp(0)
        zero = [f"v_mov_b32 v{V_O+i}, 0" for i in range(64)] + [f"v_mov_b32 v{V_L[u]}, 0" for u in range(2)]
        self.iteration(True, False, False, 0, "K", True, False, 6, first=True, lgkm_before_bar=True, name="pre", extra=zero)
        lm = a.newlabel("L_premask")
        a.e("s_nop 7")
        a.e(f"s_cmp_lt_i32 s{S_D}, 32")
        a.e(f"s_cbranch_scc0 {lm}")
        self.mask_block(0)
        a.label(lm)
        self.rare_block(0, False, True)
        self.iteration(True, True, False, 0, "K", True, True, 4, lgkm_before_bar=True, name="it0")
        state0 = list(self.q.q)
        self.stamp(1)
        lloop = a.newlabel("L_loop"); lend = a.newlabel("L_loopend")
        a.e(f"s_cmp_eq_u32 s{S_CNT}, 0")
        a.e(f"s_cbranch_scc1 {lend}")
        a.raw(".p2align 3")
        a.label(lloop)
        self.iteration(True, True, True, 1, "K", True, True, 4, name="odd")
        self.iteration(True, True, True, 0, "K", True, True, 4, name="even")
        assert self.q.q == state0, (self.q.q, state0)
        a.e(f"s_sub_u32 s{S_CNT}, s{S_CNT}, 1")
        a.e(f"s_cmp_lg_u32 s{S_CNT}, 0")
        a.e(f"s_cbranch_scc1 {lloop}")
        a.label(lend)
        self.stamp(2)
        a.e(f"s_cmp_eq_u32 s{S_KRD}, 0")
        a.e(f"s_cselect_b32 s{S_KRD}, 49152, s{S_KRD}")
        a.e(f"s_sub_u32 s{S_KRD}, s{S_KRD}, 16384")
        self.q.q = [("stale", i) for i in range(len(self.q.q))]
        self.iteration(False, True, True, 1, "V", False, True, 4, name="last")
        sb = self.o["barrier"]
        self.o["barrier"] = False
        self.iteration(False, False, True, 0, None, False, False, 0, name="post")
        self.o["barrier"] = sb

    def epilogue(self):
        a = self.a
        a.c("==== epilogue")
        self.stamp(3)
        a.e(f"s_lshl_b32 s{S_T0}, s{S_W}, 13")
        a.e(f"s_add_u32 s{S_T0}, s{S_T0}, {LDS_PARK}")
        a.e(f"v_add_u32 v{V_T0}, s{S_T0}, v{V_L16}")
        for s in range(8):
            a.e(f"ds_read_b128 {vr(V_Q+4*s,4)}, v{V_T0} offset:{s*1024}")
        self.xlane("v_add_f32", V_L, [V_T2, V_T3])
        a.e(f"s_sub_u32 s{S_T1}, s{S_VRD}, 16384")
        a.e(f"s_add_u32 s{S_T1}, s{S_T1}, {LDS_V - LDS_PARK}")
        a.e(f"s_add_u32 s{S_T1}, s{S_T1}, s{S_T0}")
        a.e(f"s_cmp_eq_u32 s{S_G}, 0")
        a.e(f"s_cselect_b32 s{S_XOUT}, s{S_T0}, s{S_T1}")
        a.e(f"s_cselect_b32 s{S_XIN}, s{S_T1}, s{S_T0}")
        a.e(f"v_add_u32 v{V_T0}, s{S_XOUT}, v{V_L16}")
        a.e(f"v_add_u32 v{V_T1}, s{S_XIN}, v{V_L16}")
        a.e(f"s_lshl_b32 s{S_T0}, s{S_WV}, 10")
        a.e(f"s_add_u32 s{S_T0}, s{S_T0}, {LDS_SPARE}")
        a.e(f"s_xor_b32 s{S_T1}, s{S_T0}, 4096")
        a.e(f"v_add_u32 v{V_T3}, s{S_T1}, v{V_L16}")
        a.e(f"v_add_u32 v{V_T2}, s{S_T0}, v{V_L16}")
        a.e(f"ds_write_b128 v{V_T2}, {vr(V_M[0],4)}")
        a.e("s_waitcnt lgkmcnt(0)")
        a.e("s_barrier")
        for i in range(8):
            a.e(f"ds_write_b128 v{V_T0}, {vr(V_O+32+4*i,4)} offset:{i*1024}")
        a.e(f"ds_read_b128 {vr(V_E,4)}, v{V_T3}")
        a.e("s_waitcnt lgkmcnt(0)")
        a.e("s_barrier")
        X = V_S[0]
        for i in range(8):
            a.e(f"ds_read_b128 {vr(X+4*i,4)}, v{V_T1} offset:{i*1024}")
        so = [V_E + 4, V_E + 5]; sp = [V_E + 6, V_E + 7]
        tt = [V_T2, V_T3]
        for u in range(2):
            mp = V_E + 2 * u
            a.e(f"v_max_f32 v{tt[u]}, v{V_M[u]}, v{mp}")
            a.e(f"v_sub_f32 v{so[u]}, v{V_M[u]}, v{tt[u]}")
            a.e(f"v_sub_f32 v{sp[u]}, v{mp}, v{tt[u]}")
        for u in range(2):
            a.e(f"v_exp_f32 v{so[u]}, v{so[u]}")
            a.e(f"v_exp_f32 v{sp[u]}, v{sp[u]}")
        a.e("s_nop 0")
        for u in range(2):
            lp = V_E + 2 * u + 1
            a.e(f"v_mul_f32 v{tt[u]}, v{V_L[u]}, v{so[u]}")
            a.e(f"v_fmac_f32 v{tt[u]}, v{lp}, v{sp[u]}")
        for u in range(2):
            a.e(f"v_rcp_f32 v{tt[u]}, v{tt[u]}")
        a.e("s_nop 0")
        for u in range(2):
            a.e(f"v_mul_f32 v{so[u]}, v{so[u]}, v{tt[u]}")
            a.e(f"v_mul_f32 v{sp[u]}, v{sp[u]}, v{tt[u]}")
        for i in range(32):
            u = (i >> 2) & 1
            a.e(f"v_mul_f32 v{V_O+i}, v{V_O+i}, v{so[u]}")
        for i in range(32):
            u = (i >> 2) & 1
            if i % 4 == 0:
                a.e(f"s_waitcnt lgkmcnt({7 - i//4})")
            a.e(f"v_fmac_f32 v{V_O+i}, v{X+i}, v{sp[u]}")
        a.e(f"s_lshl_b32 s{S_T0}, s{S_QB}, 20")
        a.e(f"s_add_u32 s{S_T0}, s{S_T0}, s{S_CSOFF}")
        a.e(f"s_add_u32 s{S_T1}, s{S_T0}, 131072")
        for c in range(2):
            for u in range(2):
                dst = V_O + 32 + (c * 2 + u) * 4
                for h in range(2):
                    src = V_O + ((2 * c + h) * 2 + u) * 4
                    a.e(f"v_cvt_pk_bf16_f32 v{dst+2*h}, v{src}, v{src+1}")
                    a.e(f"v_cvt_pk_bf16_f32 v{dst+2*h+1}, v{src+2}, v{src+3}")
                a.e(f"buffer_store_dwordx4 {vr(dst,4)}, v{V_L16}, {sr(S_CSRD,4)}, s{S_T0 if u == 0 else S_T1} offen offset:{c*1024}")
        self.stamp(4)
        self.q.drain()


def gen_attn_kernel(a, name="attn_kernel", D=4, opts=None):
    g = AttnGen(a, D, opts)
    kernel_begin(a, name)
    lend = name + "_end"
    a.e("s_cmp_ge_u32 s2, 256")
    a.e(f"s_cbranch_scc1 {lend}")
    a.e(f"s_load_dwordx2 {sr(S_WS,2)}, s[0:1], 96")
    if g.o.get("prologue"):
        a.e("s_load_dwordx2 s[60:61], s[0:1], 16")
        a.e("s_load_dwordx4 s[64:67], s[0:1], 56")
    if g.o.get("stamp"):
        a.e("s_memtime s[96:97]")
        a.e("s_memrealtime s[98:99]")
    a.e(f"v_lshrrev_b32 v{V_T0}, 6, v0")
    a.e("s_nop 0")
    a.e(f"v_readfirstlane_b32 s{S_WV}, v{V_T0}")
    a.e(f"v_and_b32 v{V_T1}, 63, v0")
    a.e(f"v_lshlrev_b32 v{V_L16}, 4, v{V_T1}")
    a.e(f"s_and_b32 s{S_W}, s{S_WV}, 3")
    a.e(f"s_lshr_b32 s{S_G}, s{S_WV}, 2")
    a.e(f"s_and_b32 s{S_T0}, s2, 7")
    a.e(f"s_lshl_b32 s{S_T0}, s{S_T0}, 2")
    a.e(f"s_lshr_b32 s{S_T1}, s2, 6")
    a.e(f"s_add_u32 s{S_HEAD}, s{S_T0}, s{S_T1}")
    a.e(f"s_bfe_u32 s{S_PAIR}, s2, 0x30003")
    a.e("s_waitcnt lgkmcnt(0)")
    def srd(d, off_s, const, size):
        a.e(f"s_add_u32 s{d}, s{S_WS}, {const}")
        a.e(f"s_addc_u32 s{d+1}, s{S_WS+1}, 0")
        if off_s is not None:
            a.e(f"s_add_u32 s{d}, s{d}, s{off_s}")
            a.e(f"s_addc_u32 s{d+1}, s{d+1}, 0")
        a.e(f"s_and_b32 s{d+1}, s{d+1}, 0xffff")
        a.e(f"s_mov_b32 s{d+2}, {size}")
        a.e(f"s_mov_b32 s{d+3}, 0x20000")
    a.e(f"s_lshl_b32 s{S_T0}, s{S_HEAD}, 19")
    srd(S_KSRD, S_T0, WS_KF, 1 << 19)
    srd(S_VSRD, S_T0, WS_VF, 1 << 19)
    if not g.o.get("prologue"):
        srd(S_QSRD, S_T0, WS_QF, 1 << 19)
    srd(S_CSRD, None, WS_CTX, 16 << 20)
    a.e(f"s_lshl_b32 s{S_T0}, s{S_G}, 13")
    a.e(f"v_add_u32 v{V_KB}, s{S_T0}, v{V_L16}")
    a.e(f"s_mul_i32 s{S_T1}, s{S_G}, 12288")
    a.e(f"s_add_u32 s{S_T1}, s{S_T1}, {LDS_V}")
    a.e(f"v_add_u32 v{V_VB0}, s{S_T1}, v{V_L16}")
    a.e(f"s_lshl_b32 s{S_T1}, s{S_G}, 12")
    a.e(f"s_add_u32 s{S_T1}, s{S_T1}, {LDS_V}")
    a.e(f"v_add_u32 v{V_VB1}, s{S_T1}, v{V_L16}")
    a.e(f"v_and_b32 v{V_T0}, 15, v{V_T1}")
    a.e(f"v_lshrrev_b32 v{V_T2}, 4, v{V_T1}")
    a.e(f"v_lshlrev_b32 v{V_T3}, 2, v{V_T2}")
    a.e(f"v_sub_u32 v{V_MB}, v{V_T0}, v{V_T3}")
    a.e(f"v_mov_b32 v{V_NINF}, 0xff800000")
    a.e(f"s_lshl_b32 s{S_CSOFF}, s{S_W}, 18")
    a.e(f"s_lshl_b32 s{S_T0}, s{S_HEAD}, 12")
    a.e(f"s_add_u32 s{S_CSOFF}, s{S_CSOFF}, s{S_T0}")
    a.e(f"s_lshl_b32 s{S_T0}, s{S_G}, 11")
    a.e(f"s_add_u32 s{S_CSOFF}, s{S_CSOFF}, s{S_T0}")
    a.e(f"s_mov_b32 s{S_THR}, {g.o.get('thr', '0x4b800000')}")
    a.e(f"s_lshl_b32 s{S_T2}, s{S_WV}, 11")
    a.e(f"s_mov_b32 s{S_KCUR}, s{S_T2}")
    a.e(f"s_mov_b32 s{S_VCUR}, s{S_T2}")
    a.e(f"s_sub_u32 s{S_QB}, 15, s{S_PAIR}")
    a.e(f"s_lshl_b32 s{S_T0}, s{S_QB}, 15")
    a.e(f"s_add_u32 s{S_T0}, s{S_T0}, 32768")
    a.e(f"s_add_u32 s{S_KWRAP}, s{S_T0}, s{S_T2}")
    a.e(f"s_mov_b32 s{S_VWRAP}, s{S_KWRAP}")
    a.e(f"s_add_u32 s{S_KDST0}, s{S_T2}, {LDS_K}")
    a.e(f"s_mov_b32 s{S_KDST}, s{S_KDST0}")
    a.e(f"s_add_u32 s{S_KDSTEND}, s{S_KDST0}, 49152")
    a.e(f"s_add_u32 s{S_VDST0}, s{S_T2}, {LDS_V}")
    a.e(f"s_mov_b32 s{S_VDST}, 0")
    a.e(f"s_mov_b32 s{S_KRD}, 32768")
    a.e(f"s_mov_b32 s{S_VRD}, 49152")
    a.e(f"s_mov_b32 s{S_PASS}, 0")
    if g.o.get("prologue"):
        from gen_pro import prologue
        prologue(a, g, name)
    else:
        a.e(f"s_lshl_b32 s{S_T0}, s{S_QB}, 2")
        a.e(f"s_add_u32 s{S_T0}, s{S_T0}, s{S_W}")
        a.e(f"s_lshl_b32 s{S_T0}, s{S_T0}, 13")
        for s in range(8):
            a.e(f"s_add_u32 s{S_T1}, s{S_T0}, {s*1024}")
            a.e(f"buffer_load_dwordx4 {vr(V_Q+4*s,4)}, v{V_L16}, {sr(S_QSRD,4)}, s{S_T1} offen")
        a.e(f"s_lshl_b32 s{S_T0}, s{S_PAIR}, 2")
        a.e(f"s_add_u32 s{S_T0}, s{S_T0}, s{S_W}")
        a.e(f"s_lshl_b32 s{S_T0}, s{S_T0}, 13")
        a.e(f"s_lshl_b32 s{S_T1}, s{S_G}, 12")
        a.e(f"s_add_u32 s{S_T0}, s{S_T0}, s{S_T1}")
        a.e(f"s_lshl_b32 s{S_XIN}, s{S_W}, 13")
        a.e(f"s_add_u32 s{S_XIN}, s{S_XIN}, s{S_T1}")
        a.e(f"s_add_u32 m0, s{S_XIN}, {LDS_PARK}")
        a.e("s_nop 0")
        for s in range(4):
            a.e(f"buffer_load_dwordx4 v{V_L16}, {sr(S_QSRD,4)}, s{S_T0} offen offset:{s*1024} lds")
        for grp in [g.dma_k(), g.dma_k(), g.dma_v(), g.dma_k(), g.dma_v()]:
            for gg in grp:
                for s in gg:
                    a.e(s)
    lq = name + "_qblock"
    g.lq2 = name + "_qblock2"
    def qsetup():
        a.e(f"s_lshl_b32 s{S_D}, s{S_QB}, 2")
        a.e(f"s_add_u32 s{S_D}, s{S_D}, s{S_W}")
        a.e(f"s_sub_u32 s{S_D}, s{S_D}, s{S_G}")
        a.e(f"s_lshl_b32 s{S_D}, s{S_D}, 5")
        a.e(f"s_mov_b32 s{S_CNT}, s{S_QB}")
    if g.o.get("prologue"):
        qsetup()
        a.e(f"s_branch {g.lq2}")
    a.label(lq)
    qsetup()
    g.qblock()
    g.epilogue()
    a.e(f"s_cmp_eq_u32 s{S_PASS}, 1")
    a.e(f"s_cbranch_scc1 {lend}")
    a.e(f"s_mov_b32 s{S_PASS}, 1")
    a.e(f"s_mov_b32 s{S_QB}, s{S_PAIR}")
    a.e(f"s_mov_b32 s{S_KWRAP}, -1")
    a.e(f"s_mov_b32 s{S_VWRAP}, -1")
    a.e(f"s_branch {lq}")
    for blk in g.ool:
        blk()
    a.label(lend)
    if g.o.get("stamp"):
        a.e("s_cmp_ge_u32 s2, 256")
        a.e(f"s_cbranch_scc1 {lend}2")
        a.e("s_memtime s[64:65]")
        a.e("s_memrealtime s[66:67]")
        a.e("s_waitcnt lgkmcnt(0)")
        a.e("s_sub_u32 s64, s64, s96")
        a.e("s_sub_u32 s66, s66, s98")
        a.e("v_mov_b32 v20, s64")
        a.e("v_mov_b32 v21, s66")
        a.e("v_mov_b32 v22, s98")
        a.e("v_mov_b32 v23, 0")
        a.e(f"s_add_u32 s{S_QSRD}, s{S_WS}, {101*MB}")
        a.e(f"s_addc_u32 s{S_QSRD+1}, s{S_WS+1}, 0")
        a.e(f"s_and_b32 s{S_QSRD+1}, s{S_QSRD+1}, 0xffff")
        a.e(f"s_mov_b32 s{S_QSRD+2}, {1<<20}")
        a.e(f"s_lshl_b32 s{S_T0}, s2, 3")
        a.e(f"s_add_u32 s{S_T0}, s{S_T0}, s{S_WV}")
        a.e(f"s_lshl_b32 s{S_T0}, s{S_T0}, 4")
        a.e("v_mov_b32 v24, 0")
        a.e(f"buffer_store_dwordx4 v[20:23], v24, {sr(S_QSRD,4)}, s{S_T0} offen")
        a.e(f"s_lshl_b32 s{S_T0}, s{S_T0}, 2")
        a.e(f"s_add_u32 s{S_T0}, s{S_T0}, 65536")
        for k in range(10):
            a.e(f"s_sub_u32 s{76+2*k}, s{76+2*k}, s96")
            a.e(f"v_mov_b32 v{32+k}, s{76+2*k}")
        for k in range(3):
            a.e(f"buffer_store_dwordx4 v[{32+4*k}:{35+4*k}], v24, {sr(S_QSRD,4)}, s{S_T0} offen offset:{16*k}")
        a.label(lend + "2")
    a.e("s_endpgm")
    kernel_desc(a, name, 256, 102)


if __name__ == "__main__":
    import sys, json
    variants = {
        "base": dict(D=4, opts=dict(stamp=True)),
        "d8": dict(D=8, opts=dict(stamp=True)),
        "thr1": dict(D=4, opts=dict(stamp=True, thr="0x41000000")),
    }
    for n, v in variants.items():
        a = Asm()
        a.raw(f"; @launch kernel=attn_kernel grid=(256,1,1) block=(512,1,1) lds={LDS_TOTAL}")
        a.raw('.amdgcn_target "amdgcn-amd-amdhsa--gfx950"')
        gen_attn_kernel(a, **v)
        open(f"a16_{n}.s", "w").write(a.text())
    print(",".join(f"a16_{n}.s" for n in variants))
```

```python
from common import *

NSLOT = 6
SLOT = 16384
LDS_ST = NSLOT * SLOT
LDS_X = 4 * SLOT
KV_LDS = LDS_ST + 65536
KV_THREADS = 256
KROW = 32 * 8192

S_CKV, S_W, S_OUT, S_X, S_XN, S_SIDE, S_SOUT = 4, 8, 12, 16, 20, 24, 28
S_WS = 32
S_P0 = 34
S_WV, S_MT, S_NT, S_T0, S_T1, S_T2 = 46, 47, 48, 49, 50, 51
S_WDST, S_AOFF, S_OOFF, S_ISV, S_XST = 53, 54, 56, 57, 52
S_SSRC, S_STG, S_SOOFF, S_SSTR, S_XOFF, S_XNOFF = 58, 59, 60, 61, 62, 63
S_T3, S_T4 = 64, 65
S_PAT = {0: 94, 4: 95, 12: 88, 8: 89}

V_L16 = 1
V_DW, V_DA, V_AR, V_AX, V_TRB, V_DS = 2, 6, 10, 12, 14, 18
V_TR = [[14, 15], [16, 17]]
V_XNO, V_XNO2, V_LN = 22, 23, 34
V_LT = [24, 29]
V_T0, V_T1, V_T2, V_T3 = 24, 25, 26, 27
V_TS0, V_TS1 = 35, 36
V_X = [40, 48]
V_PK = 56
V_WF = 72
V_SF = 96
V_ACC = 128


def MFX(d, x, y, c):
    cs = c if isinstance(c, str) else vr(c, 4)
    return f"v_mfma_f32_16x16x32_bf16 {vr(d,4)}, {x}, {y}, {cs}"


def ln_list(X, T):
    L = []
    e = L.append
    S1, S2, M, A0, A1 = T, T + 1, T + 2, T + 3, T + 4
    for i in range(4):
        e(f"v_cndmask_b32 v{X+4+i}, 0, v{X+4+i}, vcc")
    for i in range(8):
        e(f"v_lshlrev_b32 v{A0}, 16, v{X+i}")
        e(f"v_and_b32 v{A1}, 0xffff0000, v{X+i}")
        e(f"v_add_f32 v{S1}, v{A0}, v{A1}" if i == 0 else f"v_add_f32 v{S1}, v{S1}, v{A0}")
        if i > 0:
            e(f"v_add_f32 v{S1}, v{S1}, v{A1}")
    def wave_sum(r, t):
        for ctl in ("quad_perm:[1,0,3,2]", "quad_perm:[2,3,0,1]", "row_half_mirror", "row_mirror"):
            e(f"v_add_f32_dpp v{r}, v{r}, v{r} {ctl} row_mask:0xf bank_mask:0xf")
        for sw in ("v_permlane16_swap_b32", "v_permlane32_swap_b32"):
            e(f"v_mov_b32 v{t}, v{r}")
            e(f"{sw} v{r}, v{t}")
            e(f"v_add_f32 v{r}, v{r}, v{t}")
    wave_sum(S1, S2)
    e(f"v_mul_f32 v{M}, {1.0/640!r}, v{S1}")
    for n, i in enumerate([4, 5, 6, 7, 0, 1, 2, 3]):
        e(f"v_lshlrev_b32 v{A0}, 16, v{X+i}")
        e(f"v_and_b32 v{A1}, 0xffff0000, v{X+i}")
        e(f"v_sub_f32 v{A0}, v{A0}, v{M}")
        e(f"v_sub_f32 v{A1}, v{A1}, v{M}")
        e(f"v_mul_f32 v{S1}, v{A0}, v{A0}" if n == 0 else f"v_fmac_f32 v{S1}, v{A0}, v{A0}")
        e(f"v_fmac_f32 v{S1}, v{A1}, v{A1}")
        if n == 3:
            e(f"v_cndmask_b32 v{S1}, 0, v{S1}, vcc")
    wave_sum(S1, S2)
    def rnd(r):
        e(f"v_cvt_pk_bf16_f32 v{r}, v{r}, v{r}")
        e(f"v_and_b32 v{r}, 0xffff0000, v{r}")
    e(f"v_mul_f32 v{S1}, {1.0/640!r}, v{S1}")
    rnd(S1)
    e(f"v_add_f32 v{S1}, {1e-5!r}, v{S1}")
    rnd(S1)
    e(f"v_sqrt_f32 v{S1}, v{S1}")
    rnd(S1)
    e(f"v_rcp_f32 v{S2}, v{S1}")
    rnd(M)
    for i in range(8):
        e(f"v_lshlrev_b32 v{A0}, 16, v{X+i}")
        e(f"v_and_b32 v{A1}, 0xffff0000, v{X+i}")
        e(f"v_sub_f32 v{A0}, v{A0}, v{M}")
        e(f"v_sub_f32 v{A1}, v{A1}, v{M}")
        e(f"v_cvt_pk_bf16_f32 v{X+i}, v{A0}, v{A1}")
        e(f"v_lshlrev_b32 v{A0}, 16, v{X+i}")
        e(f"v_and_b32 v{A1}, 0xffff0000, v{X+i}")
        e(f"v_mul_f32 v{A0}, v{A0}, v{S2}")
        e(f"v_mul_f32 v{A1}, v{A1}, v{S2}")
        e(f"v_cvt_pk_bf16_f32 v{X+i}, v{A0}, v{A1}")
    return L


def gen_kv_kernel(a, name="kv_kernel", opts=None):
    o = dict(stamp=False, D=5, st="", starts=(0, 4, 16, 24), lnstart=40, siderd=150)
    if opts:
        o.update(opts)
    ST = o["st"]
    D = o["D"]
    st0 = o["starts"]
    blocks = []
    for tau in range(st0[3] + 16):
        for q in range(4):
            if 0 <= tau - st0[q] < 16:
                blocks.append((q, tau - st0[q]))
    assert len(blocks) == 64
    quads = []
    for Q in range(16):
        b = blocks[4 * Q:4 * Q + 4]
        if b[1][0] == b[0][0]:
            assert all(b[j] == (b[0][0], b[0][1] + j) for j in range(4))
            pat = 0
        else:
            pat = b[0][1] - b[1][1]
            assert b[1][0] == b[0][0] + 1 and b[2] == (b[0][0], b[0][1] + 1) and b[3] == (b[1][0], b[1][1] + 1)
        quads.append((b[0][1] * KROW + b[0][0] * 128, pat))
    pats = sorted(set(p for _, p in quads))
    spat = {p: [94, 95, 88, 89][i] for i, p in enumerate(pats)}
    seq = []
    for Q in range(16):
        if Q == 15:
            for ntl in range(4):
                for j in range(4):
                    seq.append((Q, j, ntl) + blocks[4 * Q + j])
        else:
            for j in range(4):
                for ntl in range(4):
                    seq.append((Q, j, ntl) + blocks[4 * Q + j])
    N = len(seq)
    first_use = {}
    for i, s in enumerate(seq):
        first_use.setdefault(s[4] >> 1, i)

    kernel_begin(a, name)
    lend = name + "_end"
    a.e("s_cmp_ge_u32 s2, 256")
    a.e(f"s_cbranch_scc1 {lend}")
    a.e(f"s_load_dwordx4 {sr(S_P0+2,4)}, s[0:1], 0")
    a.e(f"s_load_dwordx4 {sr(S_P0+6,4)}, s[0:1], 24")
    a.e(f"s_load_dwordx2 {sr(S_WS,2)}, s[0:1], 96")
    a.e(f"s_load_dwordx2 {sr(S_P0,2)}, s[0:1], 40")
    a.e(f"s_load_dwordx2 {sr(S_P0+10,2)}, s[0:1], 72")
    if o["stamp"]:
        stamp_begin(a)
    a.e(f"v_lshrrev_b32 v{V_T0}, 6, v0")
    a.e(f"v_and_b32 v{V_LN}, 63, v0")
    a.e(f"v_readfirstlane_b32 s{S_WV}, v{V_T0}")
    a.e(f"v_lshlrev_b32 v{V_L16}, 4, v{V_LN}")
    a.e(f"s_lshr_b32 s{S_MT}, s2, 5")
    a.e(f"s_bfe_u32 s{S_ISV}, s2, 0x10004")
    a.e(f"s_and_b32 s{S_T0}, s2, 7")
    a.e(f"s_lshl_b32 s{S_T0}, s{S_T0}, 1")
    a.e(f"s_bfe_u32 s{S_T1}, s2, 0x10003")
    a.e(f"s_add_u32 s{S_NT}, s{S_T0}, s{S_T1}")
    a.e(f"v_lshrrev_b32 v{V_T0}, 3, v{V_LN}")
    a.e(f"v_lshrrev_b32 v{V_T1}, 4, v{V_LN}")
    a.e(f"v_and_b32 v{V_T2}, 7, v{V_LN}")
    a.e(f"v_xor_b32 v{V_T2}, v{V_T2}, v{V_T1}")
    a.e(f"v_lshlrev_b32 v{V_T2}, 4, v{V_T2}")
    a.e(f"v_lshl_add_u32 v{V_DA}, v{V_T0}, 10, v{V_T2}")
    a.e(f"v_xor_b32 v{V_T0}, 64, v{V_DA}")
    a.e(f"v_add_u32 v{V_DA+1}, {8192-1024}, v{V_T0}")
    a.e(f"v_add_u32 v{V_DA+2}, {2*(8192-1024)}, v{V_DA}")
    a.e(f"v_add_u32 v{V_DA+3}, {3*(8192-1024)}, v{V_T0}")
    a.e(f"v_bfe_u32 v{V_T0}, v{V_LN}, 4, 1")
    a.e(f"v_bfe_u32 v{V_T1}, v{V_LN}, 2, 2")
    a.e(f"v_bfe_u32 v{V_T2}, v{V_LN}, 1, 1")
    a.e(f"v_xor_b32 v{V_T2}, v{V_T2}, v{V_T0}")
    a.e(f"v_and_b32 v{V_T3}, 1, v{V_LN}")
    a.e(f"v_lshl_add_u32 v{V_T2}, v{V_T2}, 1, v{V_T3}")
    a.e(f"v_lshrrev_b32 v{V_T3}, 5, v{V_LN}")
    a.e(f"v_lshl_add_u32 v{V_T2}, v{V_T3}, 2, v{V_T2}")
    a.e(f"v_lshlrev_b32 v{V_T2}, 4, v{V_T2}")
    a.e(f"v_lshl_add_u32 v{V_T3}, v{V_T0}, 3, v{V_T1}")
    a.e(f"v_lshl_add_u32 v{V_DW}, v{V_T3}, 13, v{V_T2}")
    for hp in range(1, 4):
        a.e(f"v_add_u32 v{V_DW+hp}, {(16*(hp&1) + 4*(hp>>1))*8192 - 1024*hp}, v{V_DW}")
    a.e(f"v_lshl_add_u32 v{V_T3}, v{V_T0}, 2, v{V_T1}")
    a.e(f"v_mul_u32_u24 v{V_DS}, 1280, v{V_T3}")
    a.e(f"v_add_u32 v{V_DS}, v{V_DS}, v{V_T2}")
    a.e(f"s_lshl_b32 s{S_T1}, s{S_NT}, 9")
    a.e(f"s_mul_i32 s{spat[0]}, s{S_WV}, {KROW}")
    a.e(f"s_add_u32 s{spat[0]}, s{spat[0]}, s{S_T1}")
    a.e(f"s_lshl_b32 s{S_WDST}, s{S_WV}, 12")
    a.e(f"s_lshl_b32 s{S_STG}, s{S_WV}, 14")
    a.e(f"s_add_u32 s{S_STG}, s{S_STG}, {LDS_ST}")
    a.e(f"s_lshl_b32 s{S_AOFF}, s{S_MT}, 2")
    a.e(f"s_add_u32 s{S_AOFF}, s{S_AOFF}, s{S_WV}")
    a.e(f"s_lshl_b32 s{S_OOFF}, s{S_AOFF}, 14")
    a.e(f"s_lshl_b32 s{S_AOFF}, s{S_AOFF}, 16")
    a.e("s_waitcnt lgkmcnt(0)")
    srd_from(a, S_CKV, S_P0 + 4, size=2048 * 1024)
    a.e(f"s_cmp_eq_u32 s{S_ISV}, 0")
    a.e(f"s_cselect_b32 s{S_T2}, s{S_P0+6}, s{S_P0+8}")
    a.e(f"s_cselect_b32 s{S_T2+1}, s{S_P0+7}, s{S_P0+9}")

    def dma_w(Q):
        base, pat = quads[Q]
        ops = []
        for hp in range(4):
            op = []
            if hp == 0:
                op += [f"s_add_u32 m0, s{S_WDST}, {(Q % NSLOT)*SLOT}",
                       f"s_add_u32 s{S_T0}, s{spat[pat]}, {base}"]
            op.append(f"buffer_load_dwordx4 v{V_DW+hp}, {sr(S_W,4)}, s{S_T0} offen offset:{hp*1024} lds")
            ops.append((op, ("W", Q)))
        return ops
    abuf = {0: 0, 1: 1, 2: None, 3: 0, 4: 1, 5: 0, 6: 1, 7: 0}
    def dma_a(c):
        ops = []
        for hf in range(2):
            for rg in range(4):
                op = []
                if rg == 0:
                    if abuf[c] is None:
                        op.append(f"s_add_u32 m0, s{S_XST}, {hf*4096}")
                    else:
                        op.append(f"s_add_u32 m0, s{S_STG}, {abuf[c]*8192 + hf*4096}")
                    op.append(f"s_add_u32 s{S_T0}, s{S_AOFF}, {hf*32768 + c*128}")
                op.append(f"buffer_load_dwordx4 v{V_DA+rg}, {sr(S_CKV,4)}, s{S_T0} offen offset:{rg*1024} lds")
                ops.append((op, ("A", c)))
        return ops
    def emit_now(ops):
        for op, tag in ops:
            for s in op:
                a.e(s)
    pre = []
    x = dma_a(0); emit_now(x); pre += x
    srd_from(a, S_W, S_T2, size=512 * 8192)
    x = dma_w(0); emit_now(x); pre += x
    a.e(f"s_lshr_b32 s{S_T2}, s{S_WV}, 1")
    a.e(f"s_mul_i32 s{S_T2}, s{S_T2}, {KROW}")
    a.e(f"s_add_u32 s{S_T2}, s{S_T2}, s{S_T1}")
    a.e(f"s_and_b32 s{S_T3}, s{S_WV}, 1")
    for p in pats[1:]:
        a.e(f"s_mul_i32 s{spat[p]}, s{S_T3}, {(128 - p*KROW) & 0xffffffff}")
        a.e(f"s_add_u32 s{spat[p]}, s{spat[p]}, s{S_T2}")
    a.e(f"s_lshl_b32 s{S_XST}, s{S_WV}, 13")
    a.e(f"s_add_u32 s{S_XST}, s{S_XST}, {LDS_X}")
    a.e(f"v_and_b32 v{V_T0}, 15, v{V_LN}")
    a.e(f"v_lshrrev_b32 v{V_T1}, 4, v{V_LN}")
    a.e(f"v_lshrrev_b32 v{V_T2}, 1, v{V_T0}")
    a.e(f"v_xor_b32 v{V_T1}, v{V_T1}, v{V_T2}")
    a.e(f"v_lshlrev_b32 v{V_T1}, 4, v{V_T1}")
    a.e(f"v_lshl_add_u32 v{V_T0}, v{V_T0}, 7, v{V_T1}")
    a.e(f"v_add_u32 v{V_AR}, s{S_STG}, v{V_T0}")
    a.e(f"v_xor_b32 v{V_AR+1}, 64, v{V_AR}")
    a.e(f"v_add_u32 v{V_AX}, s{S_XST}, v{V_T0}")
    a.e(f"v_xor_b32 v{V_AX+1}, 64, v{V_AX}")
    x = dma_a(1); emit_now(x); pre += x
    a.e(f"v_lshrrev_b32 v{V_T0}, 5, v{V_LN}")
    a.e(f"v_bfe_u32 v{V_T1}, v{V_LN}, 2, 3")
    a.e(f"v_lshlrev_b32 v{V_T1}, 6, v{V_T1}")
    a.e(f"v_lshl_add_u32 v{V_T0}, v{V_T0}, 10, v{V_T1}")
    a.e(f"v_bfe_u32 v{V_T1}, v{V_LN}, 4, 1")
    a.e(f"v_lshl_add_u32 v{V_T0}, v{V_T1}, 5, v{V_T0}")
    a.e(f"v_and_b32 v{V_T1}, 3, v{V_LN}")
    a.e(f"v_lshl_add_u32 v{V_TR[0][0]}, v{V_T1}, 3, v{V_T0}")
    a.e(f"v_xor_b32 v{V_TR[0][1]}, 32, v{V_TR[0][0]}")
    a.e(f"v_add_u32 v{V_TR[1][0]}, 49152, v{V_TR[0][0]}")
    a.e(f"v_add_u32 v{V_TR[1][1]}, 49152, v{V_TR[0][1]}")
    a.e(f"s_add_u32 s{S_T2}, s{S_STG}, 8192")
    a.e(f"v_add_u32 v{V_TS0}, s{S_T2}, v{V_TR[0][0]}")
    a.e(f"v_add_u32 v{V_TS1}, s{S_T2}, v{V_TR[0][1]}")
    for hp in range(1, 4):
        a.e(f"v_add_u32 v{V_DS+hp}, {hp*(8*1280 - 1024)}, v{V_DS}")
    x = dma_a(2) + dma_w(1); emit_now(x); pre += x
    a.e(f"s_lshl_b32 s{S_T0}, s{S_NT}, 20")
    a.e(f"s_add_u32 s{S_OOFF}, s{S_OOFF}, s{S_T0}")
    a.e(f"v_lshrrev_b32 v{V_T0}, 2, v{V_LN}")
    a.e(f"v_and_b32 v{V_T2}, 3, v{V_LN}")
    a.e(f"v_lshlrev_b32 v{V_T2}, 8, v{V_T2}")
    a.e(f"v_lshl_add_u32 v{V_XNO}, v{V_T0}, 10, v{V_T2}")
    a.e(f"v_cmp_gt_u32 vcc, 16, v{V_LN}")
    a.e(f"v_mov_b32 v{V_T0}, 0x40000000")
    a.e(f"v_add_u32 v{V_T2}, 16384, v{V_XNO}")
    a.e(f"v_cndmask_b32 v{V_XNO2}, v{V_T0}, v{V_T2}, vcc")
    a.e(f"s_lshl_b32 s{S_T1}, s{S_ISV}, 24")
    srd_from(a, S_OUT, S_WS, WS_KF, S_T1, 16 << 20)
    srd_from(a, S_X, S_P0 + 2, size=2048 * 1280)
    srd_from(a, S_XN, S_WS, WS_XN, None, 2048 * 1280)
    a.e(f"s_lshl_b32 s{S_T0}, s2, 2")
    a.e(f"s_add_u32 s{S_T0}, s{S_T0}, s{S_WV}")
    a.e(f"s_mul_i32 s{S_XOFF}, s{S_T0}, 2560")
    a.e(f"s_lshr_b32 s{S_T1}, s{S_T0}, 3")
    a.e(f"s_mul_i32 s{S_XNOFF}, s{S_T1}, 20480")
    a.e(f"s_and_b32 s{S_T1}, s{S_T0}, 7")
    a.e(f"s_lshl_b32 s{S_T1}, s{S_T1}, 5")
    a.e(f"s_add_u32 s{S_XNOFF}, s{S_XNOFF}, s{S_T1}")
    a.e(f"s_mul_i32 s{S_T1}, s{S_T0}, 13108")
    a.e(f"s_lshr_b32 s{S_T1}, s{S_T1}, 16")
    a.e(f"s_mul_i32 s{S_T2}, s{S_T1}, 5")
    a.e(f"s_sub_u32 s{S_T0}, s{S_T0}, s{S_T2}")
    a.e(f"s_cmp_lt_u32 s{S_T1}, 128")
    a.e(f"s_cselect_b32 s{S_T3}, s{S_P0}, s{S_P0+10}")
    a.e(f"s_cselect_b32 s{S_T4}, s{S_P0+1}, s{S_P0+11}")
    a.e(f"s_mov_b32 s{S_T2}, {4096*1280}")
    a.e(f"s_cselect_b32 s{S_T2}, s{S_T2}, {1728*1280}")
    a.e(f"s_mov_b32 s{S_SSTR}, {128*1024}")
    a.e(f"s_cselect_b32 s{S_SSTR}, s{S_SSTR}, {54*1024}")
    a.e(f"s_cselect_b32 s{S_SOOFF}, 0, {WS_W2F - WS_WOF}")
    a.e(f"s_cmp_lt_u32 s{S_T1}, 182")
    a.e(f"s_cselect_b32 s{S_T2}, s{S_T2}, 0")
    srd_from(a, S_SIDE, S_T3, size=0)
    a.e(f"s_mov_b32 s{S_SIDE+2}, s{S_T2}")
    srd_from(a, S_SOUT, S_WS, WS_WOF, S_SOOFF, 0)
    a.e(f"s_mov_b32 s{S_SOUT+2}, s{S_T2}")
    a.e(f"s_and_b32 s{S_T1}, s{S_T1}, 127")
    a.e(f"s_mul_i32 s{S_SSRC}, s{S_T1}, 40960")
    a.e(f"s_lshl_b32 s{S_T2}, s{S_T0}, 8")
    a.e(f"s_add_u32 s{S_SSRC}, s{S_SSRC}, s{S_T2}")
    a.e(f"s_mul_i32 s{S_SOOFF}, s{S_T0}, s{S_SSTR}")
    a.e(f"s_lshl_b32 s{S_SOOFF}, s{S_SOOFF}, 3")
    a.e(f"s_lshl_b32 s{S_T1}, s{S_T1}, 10")
    a.e(f"s_add_u32 s{S_SOOFF}, s{S_SOOFF}, s{S_T1}")

    def side_loads():
        ops = []
        for u in range(2):
            for hp in range(4):
                op = []
                if hp == 0:
                    op += [f"s_add_u32 m0, s{S_STG}, {8192 + u*4096}",
                           f"s_add_u32 s{S_T0}, s{S_SSRC}, {u*128}"]
                op.append(f"buffer_load_dwordx4 v{V_DS+hp}, {sr(S_SIDE,4)}, s{S_T0} offen offset:{hp*1024} lds")
                ops.append((op, "S"))
        return ops

    def body(isv):
        vq = OpQ(); lq = OpQ()
        for op, tag in pre:
            vq.issue(tag)
        cur = []
        pend = []
        def emit_one():
            if not cur:
                if not pend:
                    return False
                pend.sort(key=lambda x: x[0])
                cur.extend(pend.pop(0)[1])
            op, tag = cur.pop(0)
            if not (o.get("nodma") and tag[0] in o["nodma"]):
                for s in op:
                    a.e(s)
                vq.issue(tag)
            return True
        def vwait(tag):
            while any(t == tag for _, t in cur) or any(t == tag for _, g in pend for _, t in g):
                emit_one()
            w = vq.need(tag)
            if w is not None:
                a.e(f"s_waitcnt vmcnt({w})")
        def lwait(tag):
            w = lq.need(tag)
            if w is not None:
                a.e(f"s_waitcnt lgkmcnt({min(w, 15)})")
        def rd(i):
            Q, j, ntl, q, ks = seq[i]
            f = V_WF + 4 * (i % D)
            base = (Q % NSLOT) * SLOT + j * 4096 + (ntl >> 1) * 512
            win = 1 if base >= 49152 else 0
            for h in range(2):
                if o.get("nord"):
                    continue
                a.e(f"ds_read_b64_tr_b16 {vr(f+2*h,2)}, v{V_TR[win][ntl&1]} offset:{base + h*2048 - win*49152}")
                lq.issue(i)
        def rd_act(c, k):
            if k == 0:
                vwait(("A", c))
            e_ = k >> 1
            for t in range(2 * (k & 1), 2 * (k & 1) + 2):
                if abuf[c] is None:
                    a.e(f"ds_read_b128 {ar(((2*c+e_)*4+t)*4,4)}, v{V_AX+e_} offset:{t*2048}")
                else:
                    a.e(f"ds_read_b128 {ar(((2*c+e_)*4+t)*4,4)}, v{V_AR+e_} offset:{abuf[c]*8192 + t*2048}")
                lq.issue(("A", c, e_))
        npk = [0]
        def out_unit(q, x, y):
            dst = V_PK + 4 * (npk[0] & 3); npk[0] += 1
            acc = V_ACC + (q & 1) * 64
            if isv:
                tp, ntl = x, y
                s0 = acc + ((2 * tp) * 4 + ntl) * 4; s1 = s0 + 16
                off = (q >> 1) * (1 << 19) + tp * 8192 + ((q & 1) * 4 + ntl) * 1024
            else:
                t, sp = x, y
                s0 = acc + (t * 4 + 2 * sp) * 4; s1 = s0 + 4
                off = (q >> 1) * (1 << 19) + (t >> 1) * 8192 + ((t & 1) * 4 + (q & 1) * 2 + sp) * 1024
            return [f"v_cvt_pk_bf16_f32 v{dst}, v{s0}, v{s0+1}",
                    f"v_cvt_pk_bf16_f32 v{dst+1}, v{s0+2}, v{s0+3}",
                    f"v_cvt_pk_bf16_f32 v{dst+2}, v{s1}, v{s1+1}",
                    f"v_cvt_pk_bf16_f32 v{dst+3}, v{s1+2}, v{s1+3}",
                    f"s_add_u32 s{S_T3}, s{S_OOFF}, {off}",
                    f"buffer_store_dwordx4 {vr(dst,4)}, v{V_L16}, {sr(S_OUT,4)}, s{S_T3} offen{ST}"]
        outq = []
        l0 = ln_list(V_X[0], V_LT[0]); l1 = ln_list(V_X[1], V_LT[1])
        ln = [x for pair in zip(l0, l1) for x in pair] if not o.get("noln") else ["s_nop 0"]
        ln_started = False
        nrd = 0
        act_at = {}
        for c in range(1, 8):
            for k in range(4):
                act_at[first_use[c] - D - 2 + k] = (c, k)
        side_rd = o["siderd"]
        pend.append((32, dma_w(2)))
        pend.append((48, dma_w(3)))
        pend.append((o["lnstart"], [([f"buffer_load_dwordx4 {vr(V_X[r]+4*h,4)}, v{V_L16}, {sr(S_X,4)}, s{S_XOFF} offen offset:{r*1280+h*1024}"], "X")
                                    for r in range(2) for h in range(2)]))
        for k in range(4):
            rd_act(0, k)
        for i, (Q, j, ntl, q, ks) in enumerate(seq):
            while nrd < min(N, i + D):
                Q2 = seq[nrd][0]
                if nrd == 16 * Q2:
                    vwait(("W", Q2))
                    if not o.get("nobar"):
                        a.e("s_barrier")
                    if o["stamp"] and Q2 in (0, 1, 2, 4, 6, 8, 11, 14):
                        stamp_mid(a, (0, 1, 2, 4, 6, 8, 11, 14).index(Q2)); lq.drain()
                    if Q2 == 2:
                        pend.append((64, dma_w(4))); pend.append((80, dma_w(5)))
                    if Q2 >= 2 and Q2 + 4 < 16:
                        pend.append((16 * (Q2 + 4), dma_w(Q2 + 4)))
                rd(nrd); nrd += 1
            if i in act_at:
                rd_act(*act_at[i])
            c = ks >> 1
            lwait(("A", c, ks & 1))
            if i == first_use[c]:
                lwait(("A", c, 1))
                nc = {0: 3, 1: 4, 3: 5, 4: 6, 5: 7}.get(c)
                if nc:
                    pend.append((first_use[nc], dma_a(nc)))
                if c == 6:
                    pend.append((side_rd, side_loads()))
            lwait(i)
            f = vr(V_WF + 4 * (i % D), 4)
            for t in range(4):
                d = V_ACC + (q & 1) * 64 + (t * 4 + ntl) * 4
                x = ar((ks * 4 + t) * 4, 4)
                cc = d if ks > 0 else "0"
                if ks == 0:
                    assert not any(s_.startswith("v_cvt") and (f", v{d}," in s_ or f", v{d+2}," in s_) for _, s_ in outq), (i, d)
                a.e(MFX(d, x, f, cc) if isv else MFX(d, f, x, cc))
                n = 0
                if i >= o["lnstart"] and ln and (t & 1):
                    if not ln_started:
                        vwait("X")
                        ln_started = True
                    for _ in range(2):
                        if ln:
                            a.e(ln.pop(0)); n += 1
                    if not ln:
                        pend.append((i + 4, [([f"buffer_store_dwordx4 {vr(V_X[r]+4*h,4)}, v{V_XNO2 if h else V_XNO}, {sr(S_XN,4)}, s{S_XNOFF} offen offset:{r*16}{ST}"], "O")
                                             for r in range(2) for h in range(2)]))
                while outq and outq[0][0] <= i and n < 2:
                    s_ = outq.pop(0)[1]
                    a.e(s_); n += 1
                    if s_.startswith("buffer_store"):
                        vq.issue("O")
                    if s_.startswith("s_add"):
                        n -= 1
                if t == 0 or (t == 2 and i < o.get("fast", 64)):
                    emit_one()
            if ks == 15:
                if isv:
                    for tp in range(2):
                        outq += [(i + 2, s_) for s_ in out_unit(q, tp, ntl)]
                elif ntl & 1:
                    for t in range(4):
                        outq += [(i + 2, s_) for s_ in out_unit(q, t, ntl >> 1)]
            if i == side_rd:
                vwait("S")
            if side_rd <= i < side_rd + 8:
                s_ = i - side_rd
                for h in range(2):
                    a.e(f"ds_read_b64_tr_b16 {vr(V_SF+4*s_+2*h,2)}, v{V_TS1 if s_ & 1 else V_TS0} offset:{(s_>>2)*4096 + h*2048 + ((s_>>1)&1)*512}")
                    lq.issue(("T", s_))
            if side_rd + 8 <= i < side_rd + 24 and (i - side_rd) % 2 == 0:
                s_ = (i - side_rd - 8) // 2
                lwait(("T", s_))
                a.e(f"buffer_store_dwordx4 {vr(V_SF+4*s_,4)}, v{V_L16}, {sr(S_SOUT,4)}, s{S_SOOFF} offen{ST}")
                a.e(f"s_add_u32 s{S_SOOFF}, s{S_SOOFF}, s{S_SSTR}")
                vq.issue("O")
        assert not ln and not pend and not cur
        if o["stamp"]:
            stamp_mid(a, 8)
        a.e("s_nop 7")
        for _, s_ in outq:
            a.e(s_)

    lv = name + "_v"; lside = name + "_done"
    a.e(f"s_cmp_eq_u32 s{S_ISV}, 1")
    a.e(f"s_cbranch_scc1 {lv}")
    body(False)
    a.e(f"s_branch {lside}")
    a.label(lv)
    body(True)
    a.label(lside)
    if o["stamp"]:
        a.e("s_waitcnt vmcnt(0)")
        stamp_end(a, S_WS, S_WV, 0)
        stamp_dump(a, 9)
    a.label(lend)
    a.e("s_endpgm")
    kernel_desc(a, name, 512, 102, accum=256)


if __name__ == "__main__":
    variants = {"kv": {}, "kv_noln": dict(noln=1), "kv_nodma": dict(nodma="WA"),
                "kv_nord": dict(nord=1), "kv_nobar": dict(nobar=1), "kv_none": dict(nord=1, nodma="WA", noln=1), "kv_d4": dict(D=4), "kv_d6": dict(D=6)}
    for n, v in variants.items():
        a = Asm()
        a.raw(f"; @launch kernel=kv_kernel grid=(256,1,1) block=(256,1,1) lds={KV_LDS}")
        a.raw('.amdgcn_target "amdgcn-amd-amdhsa--gfx950"')
        gen_kv_kernel(a, opts=dict(stamp=True, **v))
        open(n + ".s", "w").write(a.text())
    import tarfile
    with tarfile.open("kv_all.tgz", "w:gz") as t:
        for n in variants: t.add(n + ".s")
```

```python
from common import *
import math
OUT_GRID = 256
OUT_THREADS = 256
OUT_LDS = 122880
LOG2E = math.log2(math.e)

S_CTX, S_ACTS, S_WO, S_W2, S_XS, S_OS = 4, 8, 12, 16, 20, 24
S_WS = 32
S_P0 = 34
S_WV, S_T0, S_T1, S_T2, S_TT, S_CT = 40, 41, 42, 43, 44, 45
S_A = 46
S_B = 50
S_XO = 55
V_L16, V_XO, V_RD = 1, 2, 3
V_WR = 4
V_T = 8
V_XD = 16
V_G = 28
V_S = 48
V_R = 68
V_F = 96
NG, NS = 14, 32


def gen_out_kernel(a, name="out_kernel", opts=None):
    o = dict(stamp=False, P=6, st="")
    if opts:
        o.update(opts)
    P = o["P"]
    kernel_begin(a, name)
    lend = name + "_end"
    a.e("s_cmp_ge_u32 s2, 256")
    a.e(f"s_cbranch_scc1 {lend}")
    a.e(f"s_load_dwordx2 {sr(S_WS,2)}, s[0:1], 96")
    a.e(f"s_load_dwordx2 {sr(S_P0,2)}, s[0:1], 0")
    a.e(f"s_load_dwordx2 {sr(S_P0+2,2)}, s[0:1], 80")
    if o["stamp"]:
        stamp_begin(a)
    a.e(f"v_lshrrev_b32 v{V_T}, 6, v0")
    a.e(f"v_and_b32 v{V_T+1}, 63, v0")
    a.e(f"v_readfirstlane_b32 s{S_WV}, v{V_T}")
    a.e(f"v_lshlrev_b32 v{V_L16}, 4, v{V_T+1}")
    a.e(f"s_bfe_u32 s{S_T0}, s2, 0x20001")
    a.e(f"s_lshl_b32 s{S_T0}, s{S_T0}, 3")
    a.e(f"s_lshr_b32 s{S_T1}, s2, 5")
    a.e(f"s_add_u32 s{S_TT}, s{S_T0}, s{S_T1}")
    a.e(f"s_and_b32 s{S_T0}, s2, 1")
    a.e(f"s_lshl_b32 s{S_T0}, s{S_T0}, 2")
    a.e(f"s_bfe_u32 s{S_T1}, s2, 0x20003")
    a.e(f"s_add_u32 s{S_CT}, s{S_T0}, s{S_T1}")
    a.e(f"s_mul_i32 s{S_T2}, s{S_WV}, 14")
    a.e(f"s_cmp_eq_u32 s{S_WV}, 3")
    a.e(f"s_cselect_b32 s{S_T2}, 41, s{S_T2}")
    a.e(f"s_lshl_b32 s{S_T2}, s{S_T2}, 10")
    def set_offsets(nk, t2):
        for t in range(4):
            a.e(f"s_add_u32 s{S_T0}, s{S_WV}, {t}")
            a.e(f"s_and_b32 s{S_T0}, s{S_T0}, 3")
            a.e(f"s_lshl_b32 s{S_T1}, s{S_TT}, 2")
            a.e(f"s_add_u32 s{S_T0}, s{S_T0}, s{S_T1}")
            a.e(f"s_mul_i32 s{S_T0}, s{S_T0}, {nk*1024}")
            a.e(f"s_add_u32 s{S_A+t}, s{S_T0}, s{t2}")
        a.e(f"s_mul_i32 s{S_T0}, s{S_CT}, {5*nk*1024}")
        a.e(f"s_add_u32 s{S_T0}, s{S_T0}, s{t2}")
        for n in range(5):
            a.e(f"s_add_u32 s{S_B+n}, s{S_T0}, {n*nk*1024}")
    set_offsets(54, S_T2)
    a.e("s_waitcnt lgkmcnt(0)")
    srd_from(a, S_ACTS, S_WS, WS_ACT, None, 128 * 54 * 1024)
    srd_from(a, S_W2, S_WS, WS_W2F, None, 40 * 54 * 1024)

    def fr(k, i):
        b = k % P
        if b < 4:
            return vr(V_F + b * 40 + i * 4, 4)
        return ar(120 + (b - 4) * 36 + i * 4, 4)
    vq = OpQ(); lq = OpQ()
    def loads(k):
        ops = []
        isg = k < NG
        kk = k if isg else k - NG
        pre = []
        if k == NG - 1:
            pre += [f"s_cmp_ge_u32 s{S_WV}, 2", f"s_cselect_b32 s{S_T2}, 0x40000000, 0"]
            pre += [f"s_add_u32 s{S_B+n}, s{S_B+n}, s{S_T2}" for n in range(5)]
        for i in (4, 5, 6, 7, 8, 0, 1, 2, 3):
            srd = (S_ACTS if isg else S_CTX) if i < 4 else (S_W2 if isg else S_WO)
            so = S_A + i if i < 4 else S_B + i - 4
            op = pre + [f"buffer_load_dwordx4 {fr(k,i)}, v{V_L16}, {sr(srd,4)}, s{so} offen offset:{(kk&3)*1024}"]
            pre = []
            if kk & 3 == 3:
                op.append(f"s_add_u32 s{so}, s{so}, 4096")
            ops.append((op, ("F", k)))
        return ops
    def emit(ops):
        for op, tag in ops:
            for s in op:
                a.e(s)
            vq.issue(tag)
    emit(loads(0))
    srd_from(a, S_CTX, S_WS, WS_CTX, None, 16 << 20)
    srd_from(a, S_WO, S_WS, WS_WOF, None, 40 * 128 * 1024)
    srd_from(a, S_XS, S_P0, size=2048 * 1280)
    srd_from(a, S_OS, S_P0 + 2, size=2048 * 1280)
    a.e(f"v_and_b32 v{V_T}, 15, v{V_T+1}")
    a.e(f"v_mul_u32_u24 v{V_T}, 1280, v{V_T}")
    a.e(f"v_lshrrev_b32 v{V_T+2}, 4, v{V_T+1}")
    a.e(f"v_lshl_add_u32 v{V_XO}, v{V_T+2}, 3, v{V_T}")
    a.e(f"s_lshl_b32 s{S_XO}, s{S_TT}, 2")
    a.e(f"s_add_u32 s{S_XO}, s{S_XO}, s{S_WV}")
    a.e(f"s_mul_i32 s{S_XO}, s{S_XO}, {16*1280}")
    a.e(f"s_mul_i32 s{S_T0}, s{S_CT}, 160")
    a.e(f"s_add_u32 s{S_XO}, s{S_XO}, s{S_T0}")
    a.e(f"s_mul_i32 s{S_T0}, s{S_WV}, 15360")
    a.e(f"v_add_u32 v{V_RD}, s{S_T0}, v{V_L16}")
    for t in range(1, 4):
        a.e(f"s_add_u32 s{S_T0}, s{S_WV}, {t}")
        a.e(f"s_and_b32 s{S_T0}, s{S_T0}, 3")
        a.e(f"s_mul_i32 s{S_T0}, s{S_T0}, 15360")
        a.e(f"s_add_u32 s{S_T0}, s{S_T0}, {(t-1)*5120}")
        a.e(f"v_add_u32 v{V_WR+t-1}, s{S_T0}, v{V_L16}")
    for k in range(1, P):
        emit(loads(k))
    def acc(isg, t, n):
        if t == 0:
            return vr((V_G if isg else V_S) + n * 4, 4)
        return ar((0 if isg else 60) + ((t - 1) * 5 + n) * 4, 4)
    NK = NG + NS
    extra = {}
    def reduce_writes(isg):
        return [f"ds_write_b128 v{V_WR+t-1}, {acc(isg,t,n)} offset:{n*1024}" for t in range(1, 4) for n in range(5)]
    def silu_ops():
        L = []
        for n0 in range(0, 20, 4):
            r = [V_G + n0 + k for k in range(4)]
            L += [f"v_mul_f32 v{V_T+k}, {-LOG2E!r}, v{r[k]}" for k in range(4)]
            L += [f"v_exp_f32 v{V_T+k}, v{V_T+k}" for k in range(4)]
            L += [f"v_add_f32 v{V_T+k}, 1.0, v{V_T+k}" for k in range(4)]
            L += [f"v_rcp_f32 v{V_T+k}, v{V_T+k}" for k in range(4)]
            L += [f"v_mul_f32 v{r[k]}, v{r[k]}, v{V_T+k}" for k in range(4)]
        return L
    side = []
    for k in range(NK):
        isg = k < NG
        w = vq.need(("F", k))
        a.e(f"s_waitcnt vmcnt({w})")
        nxt = loads(k + P) if k + P < NK else []
        if k + P == NG:
            a.e(f"s_lshl_b32 s{S_T2}, s{S_WV}, 15")
            set_offsets(128, S_T2)
        if k == NG + 1:
            side += reduce_writes(True)
        if k == NG + 3:
            a.e("s_waitcnt lgkmcnt(0)")
            a.e("s_barrier")
        if NG + 3 <= k < NG + 6:
            j = k - NG - 3
            side += [f"ds_read_b128 {vr(V_R+4*n,4)}, v{V_RD} offset:{j*5120 + n*1024}" for n in range(5)]
            side += ["s_nop 0"] * 6 + ["s_waitcnt lgkmcnt(0)"]
            side += [f"v_add_f32 v{V_G+i}, v{V_G+i}, v{V_R+i}" for i in range(20)]
        if k == NG + 6:
            side += silu_ops()
            side += [f"v_add_u32 v{r}, 61440, v{r}" for r in (V_RD, V_WR, V_WR + 1, V_WR + 2)]
            for n in range(5):
                a.e(f"buffer_load_dwordx2 {vr(V_XD+2*n,2)}, v{V_XO}, {sr(S_XS,4)}, s{S_XO} offen offset:{n*32}")
                vq.issue("X")
        m = 0
        for n in range(5):
            for t in range(4):
                first = (k == 0 or k == NG)
                d = acc(isg, t, n)
                a.e(f"v_mfma_f32_16x16x32_bf16 {d}, {fr(k,4+n)}, {fr(k,t)}, {'0' if first else d}")
                m += 1
                for _ in range(2):
                    if side:
                        a.e(side.pop(0))
            if nxt:
                emit([nxt.pop(0)])
        emit(nxt)
    assert not side
    if o["stamp"]:
        stamp_mid(a, 0)
    a.e("s_nop 7")
    for s in reduce_writes(False):
        a.e(s)
    a.e("s_waitcnt lgkmcnt(0)")
    a.e("s_barrier")
    for j in range(3):
        for n in range(5):
            a.e(f"ds_read_b128 {vr(V_F+(j*5+n)*4,4)}, v{V_RD} offset:{j*5120 + n*1024}")
    a.e("s_waitcnt vmcnt(0)")
    for n in range(5):
        if n == 0:
            a.e("s_waitcnt lgkmcnt(0)")
        for r in range(4):
            i = n * 4 + r
            a.e(f"v_add_f32 v{V_S+i}, v{V_S+i}, v{V_F+i}")
            a.e(f"v_add_f32 v{V_F+20+i}, v{V_F+20+i}, v{V_F+40+i}")
            src = V_XD + 2 * n + (r >> 1)
            a.e(f"v_and_b32 v{V_T+r}, 0xffff0000, v{src}" if r & 1 else f"v_lshlrev_b32 v{V_T+r}, 16, v{src}")
            a.e(f"v_add_f32 v{V_S+i}, v{V_S+i}, v{V_F+20+i}")
            a.e(f"v_fmac_f32 v{V_T+r}, v{V_S+i}, v{V_G+i}")
        a.e(f"v_cvt_pk_bf16_f32 v{V_XD+2*n}, v{V_T}, v{V_T+1}")
        a.e(f"v_cvt_pk_bf16_f32 v{V_XD+2*n+1}, v{V_T+2}, v{V_T+3}")
        a.e(f"buffer_store_dwordx2 {vr(V_XD+2*n,2)}, v{V_XO}, {sr(S_OS,4)}, s{S_XO} offen offset:{n*32}")
    if o["stamp"]:
        a.e("s_waitcnt vmcnt(0)")
        stamp_end(a, S_WS, S_WV, 2)
        stamp_dump(a, 1)
    a.label(lend)
    a.e("s_endpgm")
    kernel_desc(a, name, 256 + 192, 102, accum=256)
```

```python
import math
from common import OpQ, srd_from
from gen_attn16 import *

S_WQ, S_W1, S_B1, S_ACT = 60, 64, 68, 72
S_XNS = S_QSRD
S_QSRC, S_QDST, S_1SRC, S_1DST = 58, 59, 100, 101
S_X0, S_X1, S_AO, S_P0 = S_CNT, S_D, S_XOUT, S_XIN
V_DQ0, V_DQ1, V_D1 = 10, 11, 12
V_PTR = [[20, 21], [22, 23], [24, 25]]
V_BO = 26
V_XW = 27
P_ACC = 128
P_HACC = 192
P_XN = 32
NXR = 12
P_WF = 224
P_TMP = 248
LOG2E = math.log2(math.e)
QSCALE = LOG2E / math.sqrt(128.0)
LDS_XCH = LDS_V + 32768


def prologue(a, g, name):
    o = g.o
    D = o.get("pD", 6)
    L = o.get("lag", 4)
    a.e(f"s_lshl_b32 s{S_T0}, s{S_HEAD}, 7")
    srd_from(a, S_B1, 66, 0, S_T0, 128)
    a.e(f"s_cmp_lt_u32 s{S_HEAD}, 27")
    a.e(f"s_cselect_b32 s{S_B1+2}, 128, 0")
    srd_from(a, S_W1, 64, 0, None, 640 * 3456)
    srd_from(a, S_WQ, 60, 0, None, 640 * 8192)
    srd_from(a, S_XNS, S_WS, WS_XN, None, 2048 * 1280)
    srd_from(a, S_ACT, S_WS, WS_ACT, None, 128 * 54 * 1024)
    a.e(f"s_cmp_eq_u32 s{S_G}, 0")
    a.e(f"s_cselect_b32 s{S_T1}, s{S_QB}, s{S_PAIR}")
    a.e(f"s_lshl_b32 s{S_T1}, s{S_T1}, 2")
    a.e(f"s_add_u32 s{S_T1}, s{S_T1}, s{S_W}")
    a.e(f"s_mul_i32 s{S_X0}, s{S_T1}, 40960")
    a.e(f"s_add_u32 s{S_X1}, s{S_X0}, 20480")
    a.e(f"s_mul_i32 s{S_AO}, s{S_T1}, {2*54*1024}")
    a.e(f"s_lshl_b32 s{S_T1}, s{S_HEAD}, 11")
    a.e(f"s_add_u32 s{S_AO}, s{S_AO}, s{S_T1}")
    a.e(f"s_lshl_b32 s{S_QSRC}, s{S_G}, 18")
    a.e(f"s_lshl_b32 s{S_T1}, s{S_HEAD}, 8")
    a.e(f"s_add_u32 s{S_QSRC}, s{S_QSRC}, s{S_T1}")
    a.e(f"s_bfe_u32 s{S_T1}, s{S_WV}, 0x10001")
    a.e(f"s_lshl_b32 s{S_T1}, s{S_T1}, 7")
    a.e(f"s_add_u32 s{S_QSRC}, s{S_QSRC}, s{S_T1}")
    a.e(f"s_and_b32 s{S_T1}, s{S_WV}, 1")
    a.e(f"s_lshl_b32 s{S_T1}, s{S_T1}, 15")
    a.e(f"s_add_u32 s{S_QSRC}, s{S_QSRC}, s{S_T1}")
    a.e(f"s_mul_i32 s{S_1DST}, s{S_G}, 12288")
    a.e(f"s_lshl_b32 s{S_T1}, s{S_W}, 11")
    a.e(f"s_add_u32 s{S_QDST}, s{S_1DST}, s{S_T1}")
    a.e(f"s_lshl_b32 s{S_T1}, s{S_W}, 10")
    a.e(f"s_add_u32 s{S_1DST}, s{S_1DST}, s{S_T1}")
    a.e(f"s_add_u32 s{S_1DST}, s{S_1DST}, 8192")
    a.e(f"s_lshl_b32 s{S_1SRC}, s{S_G}, 5")
    a.e(f"s_and_b32 s{S_T1}, s{S_W}, 1")
    a.e(f"s_lshl_b32 s{S_T1}, s{S_T1}, 4")
    a.e(f"s_add_u32 s{S_1SRC}, s{S_1SRC}, s{S_T1}")
    a.e(f"s_lshr_b32 s{S_T1}, s{S_W}, 1")
    a.e(f"s_lshl_b32 s{S_T1}, s{S_T1}, 2")
    a.e(f"s_add_u32 s{S_1SRC}, s{S_1SRC}, s{S_T1}")
    a.e(f"s_mul_i32 s{S_1SRC}, s{S_1SRC}, 3456")
    a.e(f"s_add_u32 s{S_1SRC}, s{S_1SRC}, s{S_T0}")
    LN = V_T1
    A, B, C = V_T0, V_T2, V_T3
    a.e(f"v_bfe_u32 v{A}, v{LN}, 4, 1")
    a.e(f"v_bfe_u32 v{B}, v{LN}, 1, 1")
    a.e(f"v_xor_b32 v{B}, v{B}, v{A}")
    a.e(f"v_and_b32 v{C}, 1, v{LN}")
    a.e(f"v_lshl_add_u32 v{B}, v{B}, 1, v{C}")
    a.e(f"v_lshrrev_b32 v{C}, 5, v{LN}")
    a.e(f"v_lshl_add_u32 v{B}, v{C}, 2, v{B}")
    a.e(f"v_lshlrev_b32 v{B}, 4, v{B}")
    a.e(f"v_bfe_u32 v{C}, v{LN}, 2, 2")
    a.e(f"v_lshl_add_u32 v{C}, v{A}, 3, v{C}")
    a.e(f"v_lshl_add_u32 v{V_DQ0}, v{C}, 13, v{B}")
    a.e(f"v_add_u32 v{V_DQ1}, {16*8192 - 1024}, v{V_DQ0}")
    a.e(f"v_mul_u32_u24 v{V_D1}, 3456, v{C}")
    a.e(f"v_add_u32 v{V_D1}, v{V_D1}, v{B}")
    a.e(f"v_lshrrev_b32 v{V_BO}, 4, v{LN}")
    a.e(f"v_lshlrev_b32 v{V_BO}, 3, v{V_BO}")

    def late_setup():
        a.e(f"v_lshrrev_b32 v{A}, 5, v{LN}")
        a.e(f"v_bfe_u32 v{B}, v{LN}, 2, 3")
        a.e(f"v_lshlrev_b32 v{B}, 6, v{B}")
        a.e(f"v_lshl_add_u32 v{A}, v{A}, 10, v{B}")
        a.e(f"v_bfe_u32 v{B}, v{LN}, 4, 1")
        a.e(f"v_lshl_add_u32 v{A}, v{B}, 5, v{A}")
        a.e(f"v_and_b32 v{B}, 3, v{LN}")
        a.e(f"v_lshl_add_u32 v{V_PTR[0][0]}, v{B}, 3, v{A}")
        a.e(f"v_xor_b32 v{V_PTR[0][1]}, 32, v{V_PTR[0][0]}")
        for w in (1, 2):
            for e in range(2):
                a.e(f"v_add_u32 v{V_PTR[w][e]}, {49152*w}, v{V_PTR[0][e]}")
        a.e(f"s_mul_i32 s{S_T1}, s{S_G}, {LDS_PARK - LDS_XCH}")
        a.e(f"s_lshl_b32 s{S_P0}, s{S_W}, 13")
        a.e(f"s_add_u32 s{S_P0}, s{S_P0}, {LDS_XCH}")
        a.e(f"s_add_u32 s{S_T1}, s{S_T1}, s{S_P0}")
        a.e(f"v_add_u32 v{V_XW}, s{S_T1}, v{V_L16}")

    def body(has1):
        lag = L if has1 else 0
        nst = 10 + lag // 2
        def slot(j):
            idx = (j + 60 - (nst - 3)) % 6
            return 81920 + idx * 24576 if idx < 3 else (idx - 3) * 24576
        seq = []
        for tau in range(2 * nst):
            j = tau >> 1
            if has1 and tau < 20:
                for n in range(4):
                    seq.append((j, "H", tau, n, slot(j) + (tau & 1) * 12288 + 8192 + (n >> 1) * 512))
            if tau >= lag:
                for n in range(8):
                    seq.append((j, "Q", tau - lag, n, slot(j) + (tau & 1) * 12288 + (n >> 2) * 4096 + ((n >> 1) & 1) * 512))
        N = len(seq)
        stage_first = {}; xfirst = {}; xlast = {}
        for i, s in enumerate(seq):
            stage_first.setdefault(s[0], i); xfirst.setdefault(s[2], i); xlast[s[2]] = i
        lastH = max([i for i, s in enumerate(seq) if s[1] == "H"], default=-1)
        vq = OpQ(); lq = OpQ()
        cur = []; pend = []
        def dma_st(j):
            ops = []
            if has1 and j < 10:
                ops.append(([f"s_add_u32 m0, s{S_1DST}, {slot(j)}",
                             f"s_add_u32 s{S_T0}, s{S_1SRC}, {j*64*3456}",
                             f"buffer_load_dwordx4 v{V_D1}, {sr(S_W1,4)}, s{S_T0} offen lds"], ("W", j)))
            jq = j - lag // 2
            if jq >= 0:
                ops.append(([f"s_add_u32 m0, s{S_QDST}, {slot(j)}",
                             f"s_add_u32 s{S_T0}, s{S_QSRC}, {jq*64*8192}",
                             f"buffer_load_dwordx4 v{V_DQ0}, {sr(S_WQ,4)}, s{S_T0} offen lds"], ("W", j)))
                ops.append(([f"buffer_load_dwordx4 v{V_DQ1}, {sr(S_WQ,4)}, s{S_T0} offen offset:1024 lds"], ("W", j)))
            return ops
        def xn_ld(ks):
            ops = []
            for t in range(2):
                op = [f"buffer_load_dwordx4 {vr(P_XN+(ks%NXR)*8+4*t,4)}, v{V_L16}, {sr(S_XNS,4)}, s{S_X1 if t else S_X0} offen offset:{(ks&3)*1024}"]
                if ks & 3 == 3:
                    op.append(f"s_add_u32 s{S_X1 if t else S_X0}, s{S_X1 if t else S_X0}, 4096")
                ops.append((op, ("X", ks)))
            return ops
        def emit_one(i):
            if not cur:
                elig = [p for p in pend if p[1] <= i]
                if not elig:
                    return False
                p = min(elig, key=lambda x: x[0])
                pend.remove(p)
                cur.extend(p[2])
            op, tag = cur.pop(0)
            for s in op:
                a.e(s)
            vq.issue(tag)
            return True
        def vwait(tag, i):
            while any(t == tag for _, t in cur) or any(t == tag for p in pend for _, t in p[2]):
                assert emit_one(i), tag
            w = vq.need(tag)
            if w is not None:
                a.e(f"s_waitcnt vmcnt({w})")
        def lwait(tag):
            w = lq.need(tag)
            if w is not None:
                a.e(f"s_waitcnt lgkmcnt({min(w,15)})")
        def rd(i):
            j, kind, ks, n, off = seq[i]
            f = P_WF + 4 * (i % D)
            win = min(2, off // 49152)
            for h in range(2):
                a.e(f"ds_read_b64_tr_b16 {vr(f+2*h,2)}, v{V_PTR[win][n&1]} offset:{off + h*2048 - win*49152}")
                lq.issue(i)
        for grp in (dma_st(0), xn_ld(0), xn_ld(1)):
            cur.extend(grp)
            while cur:
                emit_one(0)
        if has1:
            for n in range(4):
                a.e(f"buffer_load_dwordx2 {vr(P_TMP+2*n,2)}, v{V_BO}, {sr(S_B1,4)}, 0 offen offset:{n*32}")
                vq.issue("B")
        late_setup()
        for j in range(1, 4):
            pend.append((stage_first[j], 0, dma_st(j)))
        for ks in range(2, 20):
            el = 0 if ks < NXR else xlast[ks - NXR] + 1
            el = max(el, xfirst[ks] - o.get("xla", 72))
            pend.append((xfirst[ks], el, xn_ld(ks)))
        for _ in range(o.get("pre_extra", 8)):
            emit_one(0)
        if has1:
            vwait("B", 0)
            for n in range(4):
                for r in range(4):
                    src = P_TMP + 2 * n + (r >> 1)
                    d = P_HACC + n * 4 + r
                    a.e(f"v_and_b32 v{d}, 0xffff0000, v{src}" if r & 1 else f"v_lshlrev_b32 v{d}, 16, v{src}")
        mish = []
        if has1:
            T = P_TMP
            for t in range(2):
                for cc in range(2):
                    els = [P_HACC + (t * 4 + 2 * cc) * 4 + k for k in range(8)]
                    for k0 in (0, 4):
                        e4 = els[k0:k0 + 4]
                        mish += [f"v_mul_f32 v{T+k}, {LOG2E!r}, v{h}" for k, h in enumerate(e4)]
                        mish += [f"v_exp_f32 v{T+k}, v{T+k}" for k in range(4)]
                        mish += [f"v_add_f32 v{T+k}, 1.0, v{T+k}" for k in range(4)]
                        mish += [f"v_fma_f32 v{T+k}, v{T+k}, v{T+k}, 1.0" for k in range(4)]
                        mish += [f"v_rcp_f32 v{T+k}, v{T+k}" for k in range(4)]
                        mish += [f"v_fma_f32 v{T+k}, v{T+k}, -2.0, 1.0" for k in range(4)]
                        mish += [f"v_mul_f32 v{h}, v{h}, v{T+k}" for k, h in enumerate(e4)]
                    dst = els[0]
                    mish += [f"v_cvt_pk_bf16_f32 v{dst+k}, v{els[2*k]}, v{els[2*k+1]}" for k in range(4)]
                    mish += [f"s_add_u32 s{S_T1}, s{S_AO}, {t*54*1024}",
                             f"buffer_store_dwordx4 {vr(dst,4)}, v{V_L16}, {sr(S_ACT,4)}, s{S_T1} offen offset:{cc*1024}"]
        nm_left = 2 * (N - 1 - lastH - 3)
        rate = (len(mish) + nm_left - 1) // nm_left if (mish and nm_left > 0) else 0
        rate = min(rate, o.get("mishrate", 3))
        nrd = 0
        kv = [g.dma_k(), g.dma_k(), g.dma_v(), g.dma_k(), g.dma_v()]
        for i, (j, kind, ks, n, off) in enumerate(seq):
            while nrd < min(N, i + D):
                j2 = seq[nrd][0]
                if nrd == stage_first[j2]:
                    vwait(("W", j2), i)
                    a.e("s_barrier")
                    if j2 + 4 < nst:
                        pend.append((stage_first[j2 + 4], 0, dma_st(j2 + 4)))
                    if j2 == nst - 2:
                        for k, grp in enumerate(kv):
                            pend.append((N + k, 0, [(gg, "KV") for gg in grp]))
                rd(nrd); nrd += 1
            if i == xfirst[ks]:
                vwait(("X", ks), i)
            lwait(i)
            f = P_WF + 4 * (i % D)
            for t in range(2):
                x = P_XN + (ks % NXR) * 8 + 4 * t
                if kind == "H":
                    d = P_HACC + (t * 4 + n) * 4
                    c = d if ks > 0 else P_HACC + n * 4
                    if ks == 0:
                        tt = 1 - t
                        d = P_HACC + (tt * 4 + n) * 4
                        x = P_XN + 4 * tt
                else:
                    d = P_ACC + (t * 8 + n) * 4
                    c = d if ks > 0 else "0"
                a.e(MF(d, f, x, c))
                if i > lastH + 2:
                    for _ in range(rate):
                        if mish:
                            s_ = mish.pop(0)
                            a.e(s_)
                            if s_.startswith("buffer_store"):
                                vq.issue("O")
            emit_one(i)
        while emit_one(N):
            pass
        a.e("s_nop 7")
        for s_ in mish:
            a.e(s_)
        a.e("s_barrier")
        for t in range(2):
            for s in range(4):
                src = P_ACC + (t * 8 + 2 * s) * 4
                for k in range(8):
                    a.e(f"v_mul_f32 v{src+k}, {QSCALE!r}, v{src+k}")
                for k in range(4):
                    a.e(f"v_cvt_pk_bf16_f32 v{src+k}, v{src+2*k}, v{src+2*k+1}")
                a.e(f"ds_write_b128 v{V_XW}, {vr(src,4)} offset:{(t*4+s)*1024}")

    l27 = name + "_no1"; ljoin = name + "_pj"
    a.e(f"s_cmp_ge_u32 s{S_HEAD}, 27")
    a.e(f"s_cbranch_scc1 {l27}")
    body(True)
    a.e(f"s_branch {ljoin}")
    a.label(l27)
    body(False)
    a.label(ljoin)
    a.e(f"v_add_u32 v{V_T0}, s{S_P0}, v{V_L16}")
    a.e("s_waitcnt vmcnt(8) lgkmcnt(0)")
    a.e("s_barrier")
    for s in range(8):
        a.e(f"ds_read_b128 {vr(V_Q+4*s,4)}, v{V_T0} offset:{s*1024}")
```

```python
import sys
from asmlib import *
import gen_kv, gen_attn16
HDR = open("recurrent_scan__compressed_kv_cla__dense_activation_mish__prompt.s.ref").read().split("; Override")[0]
def build(path, stamp=False, kvo=None, ato=None, outo=None, which=(1, 1, 1)):
    a = Asm()
    a.raw(HDR.rstrip())
    if which[0]:
        a.raw(f"; @launch kernel=kv_kernel grid=(256,1,1) block=({gen_kv.KV_THREADS},1,1) lds={gen_kv.KV_LDS}")
    if which[1]:
        a.raw(f"; @launch kernel=attn_kernel grid=(256,1,1) block=(512,1,1) lds={gen_attn16.LDS_TOTAL}")
    if which[2]:
        import gen_out
        a.raw(f"; @launch kernel=out_kernel grid=({gen_out.OUT_GRID},1,1) block=({gen_out.OUT_THREADS},1,1) lds={gen_out.OUT_LDS}")
    a.raw('.amdgcn_target "amdgcn-amd-amdhsa--gfx950"')
    if which[0]:
        gen_kv.gen_kv_kernel(a, opts=dict(stamp=stamp, **(kvo or {})))
    if which[1]:
        gen_attn16.gen_attn_kernel(a, D=4, opts=dict(stamp=stamp, prologue=True, **(ato or {})))
    if which[2]:
        gen_out.gen_out_kernel(a, opts=dict(stamp=stamp, **(outo or {})))
    open(path, "w").write(a.text())
if __name__ == "__main__":
    build("p123.s", stamp=True)
    build("recurrent_scan__compressed_kv_cla__dense_activation_mish__prompt.s", stamp=False)
```

```python
from asmlib import *
from layout import *

LDS_K = 0
LDS_V = 49152
LDS_PARK = 114688
LDS_SPARE = 147456
LDS_TOTAL = 163840

S_KSRD, S_VSRD, S_CSRD, S_QSRD = 4, 8, 12, 16
S_HEAD, S_PAIR, S_WV, S_W, S_G = 20, 21, 22, 23, 24
S_KCUR, S_VCUR, S_KWRAP, S_VWRAP = 25, 26, 27, 28
S_KDST, S_VDST, S_KRD, S_VRD = 29, 30, 31, 32
S_CNT, S_D, S_QB, S_PASS = 33, 34, 35, 36
S_THR, S_T0, S_T1, S_T2 = 37, 38, 39, 40
S_KDSTEND, S_XOUT, S_XIN, S_CSOFF = 41, 42, 43, 44
S_M = [46, 48, 50, 52]
S_WS = 54
S_KDST0, S_VDST0 = 56, 57

V_L16 = 1
V_KA = 2
V_VA0 = 3
V_VA1 = 4
V_KB = 5
V_VB0 = 6
V_VB1 = 7
V_MB = 8
V_NINF = 9
V_M = [10, 12]
V_L = [11, 13]
V_LS = [14, 15]
V_T0, V_T1, V_T2, V_T3 = 16, 17, 18, 19
V_E = 20
V_CK = 28
V_FR = 32
V_O = 64
V_Q = 128
V_C = 160
V_S = [176, 192]
V_P = [208, 216]


class LdsQ:
    def __init__(self):
        self.q = []
    def issue(self, tag):
        self.q.append(tag)
    def need(self, tag):
        if tag not in self.q:
            return None
        i = self.q.index(tag)
        n = len(self.q) - 1 - i
        self.q = self.q[i + 1:]
        return n
    def drain(self):
        self.q = []


def MF(d, x, y, c):
    cs = c if isinstance(c, str) else vr(c, 4)
    return f"v_mfma_f32_16x16x32_bf16 {vr(d,4)}, {vr(x,4)}, {vr(y,4)}, {cs}"


class AttnGen:
    def __init__(self, a, D=4, opts=None):
        self.a = a
        self.D = D
        self.q = LdsQ()
        self.ool = []
        self.defer = []
        self.o = dict(dma=True, barrier=True, valu=True, reads=True, check=True, spread=True)
        if opts:
            self.o.update(opts)

    def frag(self, slot):
        return V_FR + 4 * (slot % self.D)

    def read_frag(self, kind, idx, slot):
        a = self.a
        if not self.o["reads"]:
            return
        if kind == "K":
            a.e(f"ds_read_b128 {vr(self.frag(slot),4)}, v{V_KA} offset:{idx*1024}")
        else:
            base = V_VA0 if idx < 4 else V_VA1
            a.e(f"ds_read_b128 {vr(self.frag(slot),4)}, v{base} offset:{idx*1024}")
        self.q.issue((kind, idx))

    def adv_k_read(self):
        a = self.a
        a.e(f"s_add_u32 s{S_KRD}, s{S_KRD}, 16384")
        a.e(f"s_cmp_eq_u32 s{S_KRD}, 49152")
        a.e(f"s_cselect_b32 s{S_KRD}, 0, s{S_KRD}")
        a.e(f"v_add_u32 v{V_KA}, s{S_KRD}, v{V_KB}")

    def adv_v_read(self):
        a = self.a
        a.e(f"s_add_u32 s{S_VRD}, s{S_VRD}, 16384")
        a.e(f"s_and_b32 s{S_VRD}, s{S_VRD}, 0xffff")
        a.e(f"v_add_u32 v{V_VA0}, s{S_VRD}, v{V_VB0}")
        a.e(f"v_add_u32 v{V_VA1}, s{S_VRD}, v{V_VB1}")

    def dma_k(self):
        g0 = [f"s_mov_b32 m0, s{S_KDST}",
              f"s_add_u32 s{S_KDST}, s{S_KDST}, 16384",
              f"buffer_load_dwordx4 v{V_L16}, {sr(S_KSRD,4)}, s{S_KCUR} offen lds"]
        g1 = [f"buffer_load_dwordx4 v{V_L16}, {sr(S_KSRD,4)}, s{S_KCUR} offen offset:1024 lds",
              f"s_cmp_eq_u32 s{S_KDST}, s{S_KDSTEND}",
              f"s_cselect_b32 s{S_KDST}, s{S_KDST0}, s{S_KDST}",
              f"s_add_u32 s{S_KCUR}, s{S_KCUR}, 16384",
              f"s_cmp_eq_u32 s{S_KCUR}, s{S_KWRAP}",
              f"s_cselect_b32 s{S_KCUR}, s{S_T2}, s{S_KCUR}"]
        return [g0, g1]

    def dma_v(self):
        g0 = [f"s_add_u32 m0, s{S_VDST}, s{S_VDST0}",
              f"s_add_u32 s{S_VDST}, s{S_VDST}, 16384",
              f"buffer_load_dwordx4 v{V_L16}, {sr(S_VSRD,4)}, s{S_VCUR} offen lds"]
        g1 = [f"buffer_load_dwordx4 v{V_L16}, {sr(S_VSRD,4)}, s{S_VCUR} offen offset:1024 lds",
              f"s_and_b32 s{S_VDST}, s{S_VDST}, 0xffff",
              f"s_add_u32 s{S_VCUR}, s{S_VCUR}, 16384",
              f"s_cmp_eq_u32 s{S_VCUR}, s{S_VWRAP}",
              f"s_cselect_b32 s{S_VCUR}, s{S_T2}, s{S_VCUR}"]
        return [g0, g1]

    def sreg(self, par, u, e):
        return V_S[par] + ((e >> 2) * 2 + u) * 4 + (e & 3)

    def sm_ops(self, par):
        P = V_P[par]
        NT = 8
        def t(i): return V_E + (i % NT)
        exps = []
        plains = []
        for i in range(16):
            u, e = i >> 3, i & 7
            exps.append(f"v_exp_f32 v{t(i)}, v{self.sreg(par,u,e)}")
            if i & 1:
                j = i - 1
                if e == 1:
                    plains.append((i, f"v_add_f32 v{V_LS[u]}, v{t(j)}, v{t(i)}"))
                else:
                    plains.append((j, f"v_add_f32 v{V_LS[u]}, v{V_LS[u]}, v{t(j)}"))
                    plains.append((i, f"v_add_f32 v{V_LS[u]}, v{V_LS[u]}, v{t(i)}"))
                plains.append((i, f"v_cvt_pk_bf16_f32 v{P+u*4+(e>>1)}, v{t(j)}, v{t(i)}"))
        plains.append((15, f"v_add_f32 v{V_CK}, v{V_LS[0]}, v{V_LS[1]}"))
        return exps, plains

    def sm_linear(self, par):
        exps, plains = self.sm_ops(par)
        out = []
        k = 0
        for i, e in enumerate(exps):
            out.append(e)
            while k < len(plains) and plains[k][0] <= i - 1:
                out.append(plains[k][1]); k += 1
        out.append("s_nop 0")
        while k < len(plains):
            out.append(plains[k][1]); k += 1
        return out

    def mask_block(self, par):
        a = self.a
        a.e(f"v_add_u32 v{V_T0}, s{S_D}, v{V_MB}")
        for r in range(16 + 3):
            if r < 16:
                aa, u, rr = r >> 3, (r >> 2) & 1, r & 3
                cst = 16 * (aa - u) + rr
                a.e(f"v_cmp_le_i32 {sr(S_M[r%4],2)}, {cst}, v{V_T0}")
            else:
                a.e("s_nop 0")
            if r >= 3:
                x = V_S[par] + r - 3
                a.e(f"v_cndmask_b32 v{x}, v{V_NINF}, v{x}, {sr(S_M[(r-3)%4],2)}")

    def xlane(self, op, regs, tmps):
        a = self.a
        for sw in ("v_permlane16_swap_b32", "v_permlane32_swap_b32"):
            for r, t in zip(regs, tmps):
                a.e(f"v_mov_b32 v{t}, v{r}")
            a.e("s_nop 1")
            for r, t in zip(regs, tmps):
                a.e(f"{sw} v{r}, v{t}")
            a.e("s_nop 1")
            for r, t in zip(regs, tmps):
                a.e(f"{op} v{r}, v{r}, v{t}")

    def rare_block(self, par, has_next, first):
        a = self.a
        a.e("s_nop 7")
        d = [V_T0, V_T1]; f = [V_T2, V_T3]
        for u in range(2):
            s = lambda e: self.sreg(par, u, e)
            a.e(f"v_max3_f32 v{d[u]}, v{s(0)}, v{s(1)}, v{s(2)}")
            a.e(f"v_max3_f32 v{d[u]}, v{d[u]}, v{s(3)}, v{s(4)}")
            a.e(f"v_max3_f32 v{d[u]}, v{d[u]}, v{s(5)}, v{s(6)}")
            a.e(f"v_max_f32 v{d[u]}, v{d[u]}, v{s(7)}")
        self.xlane("v_max_f32", d, f)
        for u in range(2):
            if first:
                a.e(f"v_max_f32 v{d[u]}, 0xf1800000, v{d[u]}")
                a.e(f"v_mov_b32 v{V_M[u]}, v{d[u]}")
            else:
                a.e(f"v_max_f32 v{d[u]}, 0, v{d[u]}")
                a.e(f"v_add_f32 v{V_M[u]}, v{V_M[u]}, v{d[u]}")
                a.e(f"v_exp_f32 v{f[u]}, -v{d[u]}")
        for u in range(2):
            for i in range(4):
                a.e(f"v_sub_f32 v{V_C+4*u+i}, 0, v{V_M[u]}")
        for u in range(2):
            for e in range(8):
                x = self.sreg(par, u, e)
                a.e(f"v_sub_f32 v{x}, v{x}, v{d[u]}")
            if has_next:
                for e in range(8):
                    x = self.sreg(par ^ 1, u, e)
                    a.e(f"v_sub_f32 v{x}, v{x}, v{d[u]}")
        if not first:
            for u in range(2):
                a.e(f"v_mul_f32 v{V_L[u]}, v{V_L[u]}, v{f[u]}")
            for i in range(64):
                u = (i >> 2) & 1
                a.e(f"v_mul_f32 v{V_O+i}, v{V_O+i}, v{f[u]}")
            for s in self.sm_linear(par):
                a.e(s)
        a.e("s_nop 1")

    def iteration(self, qk, sm, pv, par, nxt, dk, dv, vm, first=False, lgkm_before_bar=False, name="", extra=None):
        a = self.a; D = self.D; o = self.o
        a.c(f"==== iteration {name} qk={qk} sm={sm} pv={pv} par={par}")
        slots = []
        if qk:
            slots += [("K", s) for s in range(8)]
        if pv:
            slots += [("V", i) for i in range(8)]
        n = len(slots)
        nxt_slots = [(nxt, i) for i in range(D)] if nxt else []
        allslots = slots + nxt_slots
        for i in range(min(D, n)):
            if slots[i] not in self.q.q or self._stale:
                if slots[i] == ("V", 0):
                    self.adv_v_read()
                if slots[i] == ("K", 0):
                    self.adv_k_read()
                self.read_frag(slots[i][0], slots[i][1], i)
        self._stale = False
        if sm:
            lm = a.newlabel("L_mask"); lb = a.newlabel("L_maskback")
            a.e(f"s_cmp_lt_i32 s{S_D}, 32")
            a.e(f"s_cbranch_scc1 {lm}")
            a.label(lb)
            def blk(lm=lm, lb=lb, par=par):
                a.label(lm)
                self.mask_block(par)
                a.e(f"s_branch {lb}")
            self.ool.append(blk)
        ng = 2 * n
        gaps = [[] for _ in range(ng)]
        if sm and o["valu"]:
            exps, plains = self.sm_ops(par)
            if n == 16:
                egap = [2 * i if i < 14 else 2 * i - 1 for i in range(16)]
                egap = []
                g = 0
                order = [0, 1, 2] + [2 * k for k in range(2, 15)]
                egap = order
                for i, e in enumerate(exps):
                    gaps[egap[i]].append(e)
                k = 0
                for g in range(3, ng):
                    if gaps[g]:
                        continue
                    cnt = 0
                    while k < len(plains) and cnt < 2 and egap[plains[k][0]] < g:
                        gaps[g].append(plains[k][1]); k += 1; cnt += 1
                while k < len(plains):
                    gaps[ng - 1].append(plains[k][1]); k += 1
            else:
                seq = self.sm_linear(par)
                for k, s in enumerate(seq):
                    gaps[min(ng - 1, k * ng // len(seq))].append(s)
        if extra:
            for k, s in enumerate(extra):
                gaps[min(ng - 1, k * ng // len(extra))].append(s)
        dmas = []
        if o["dma"]:
            if dk: dmas += self.dma_k()
            if dv: dmas += self.dma_v()
            if o.get("dmareg"):
                dmas = [[x.replace("buffer_load_dwordx4 v1,", "buffer_load_dwordx4 v[224:227], v1,").replace(" lds", "") for x in g_] for g_ in dmas]
            if o.get("dmahalf"):
                dmas = [[x.replace("dwordx4", "dword") for x in g_] for g_ in dmas]
        barslot = n - D
        dpos = {}
        if o.get("dspread"):
            pos = list(o["dspread"]) if n == 16 else [0, 1, 2, 3]
            for k, grp in enumerate(self.defer):
                dpos.setdefault(pos[k], []).append(grp)
            nnow = o.get("dnow", 1)
            self.defer = dmas[nnow:]
            dmas = dmas[:nnow]
        Sd = V_S[par ^ 1] if not first else V_S[0]
        for i in range(n):
            kind, idx = slots[i]
            if i == barslot:
                if lgkm_before_bar:
                    a.e("s_waitcnt lgkmcnt(0)")
                    self.q.drain()
                if o["barrier"]:
                    if o["dma"]:
                        a.e(f"s_waitcnt vmcnt({vm})")
                    a.e("s_barrier")
            w = self.q.need((kind, idx))
            if w is not None:
                a.e(f"s_waitcnt lgkmcnt({w})")
            f = self.frag(i)
            for u in range(2):
                if kind == "K":
                    aa, s = idx >> 2, idx & 3
                    d = Sd + (aa * 2 + u) * 4
                    c = d if s > 0 else ("0" if first else V_C + 4 * u)
                    a.e(MF(d, f, V_Q + (u * 4 + s) * 4, c))
                else:
                    d = V_O + (idx * 2 + u) * 4
                    a.e(MF(d, f, V_P[par ^ 1] + 4 * u, d))
                if u == 1:
                    if i + D < len(allslots):
                        k2, i2 = allslots[i + D]
                        if (k2, i2) == ("V", 0):
                            self.adv_v_read()
                        if (k2, i2) == ("K", 0):
                            self.adv_k_read()
                        self.read_frag(k2, i2, i + D)
                    if i >= barslot and dmas:
                        for s_ in dmas.pop(0):
                            a.e(s_)
                    for grp in dpos.get(i, []):
                        for s_ in grp:
                            a.e(s_)
                for s_ in gaps[2 * i + u]:
                    a.e(s_)
        for g in dmas:
            for s_ in g:
                a.e(s_)
        if sm:
            lr = a.newlabel("L_rare"); lb = a.newlabel("L_rareback")
            if o["check"]:
                a.e(f"v_cmp_nge_f32 vcc, s{S_THR}, v{V_CK}")
                a.e(f"s_sub_u32 s{S_D}, s{S_D}, 64")
                a.e(f"s_cbranch_vccnz {lr}")
            else:
                a.e(f"s_sub_u32 s{S_D}, s{S_D}, 64")
            a.label(lb)
            a.e(f"v_add_f32 v{V_L[0]}, v{V_L[0]}, v{V_LS[0]}")
            a.e(f"v_add_f32 v{V_L[1]}, v{V_L[1]}, v{V_LS[1]}")
            def blk(lr=lr, lb=lb, par=par, qk=qk):
                a.label(lr)
                self.rare_block(par, qk, False)
                a.e(f"s_branch {lb}")
            self.ool.append(blk)

    def stamp(self, k):
        a = self.a
        if not self.o.get("stamp") or self.o.get("pstamp"):
            return
        l1 = a.newlabel("L_st"); l2 = a.newlabel("L_st")
        a.e(f"s_cmp_eq_u32 s{S_PASS}, 0")
        a.e(f"s_cbranch_scc0 {l1}")
        a.e(f"s_memtime s[{76+2*k}:{77+2*k}]")
        a.e(f"s_branch {l2}")
        a.label(l1)
        a.e(f"s_memtime s[{86+2*k}:{87+2*k}]")
        a.label(l2)
        a.e("s_waitcnt lgkmcnt(0)")

    def qblock(self):
        a = self.a; D = self.D
        self._stale = True
        a.e("s_waitcnt vmcnt(8)")
        a.e("s_barrier")
        a.label(self.lq2)
        self.stamp(0)
        zero = [f"v_mov_b32 v{V_O+i}, 0" for i in range(64)] + [f"v_mov_b32 v{V_L[u]}, 0" for u in range(2)]
        self.iteration(True, False, False, 0, "K", True, False, 6, first=True, lgkm_before_bar=True, name="pre", extra=zero)
        lm = a.newlabel("L_premask")
        a.e("s_nop 7")
        a.e(f"s_cmp_lt_i32 s{S_D}, 32")
        a.e(f"s_cbranch_scc0 {lm}")
        self.mask_block(0)
        a.label(lm)
        self.rare_block(0, False, True)
        self.iteration(True, True, False, 0, "K", True, True, 4, lgkm_before_bar=True, name="it0")
        state0 = list(self.q.q)
        defer0 = list(self.defer)
        self.stamp(1)
        lloop = a.newlabel("L_loop"); lend = a.newlabel("L_loopend")
        a.e(f"s_cmp_eq_u32 s{S_CNT}, 0")
        a.e(f"s_cbranch_scc1 {lend}")
        a.raw(".p2align 3")
        a.label(lloop)
        self.iteration(True, True, True, 1, "K", True, True, 4, name="odd")
        self.iteration(True, True, True, 0, "K", True, True, 4, name="even")
        assert self.q.q == state0, (self.q.q, state0)
        assert self.defer == defer0
        a.e(f"s_sub_u32 s{S_CNT}, s{S_CNT}, 1")
        a.e(f"s_cmp_lg_u32 s{S_CNT}, 0")
        a.e(f"s_cbranch_scc1 {lloop}")
        a.label(lend)
        self.stamp(2)
        a.e(f"s_cmp_eq_u32 s{S_KRD}, 0")
        a.e(f"s_cselect_b32 s{S_KRD}, 49152, s{S_KRD}")
        a.e(f"s_sub_u32 s{S_KRD}, s{S_KRD}, 16384")
        self.q.q = [("stale", i) for i in range(len(self.q.q))]
        self.iteration(False, True, True, 1, "V", False, True, 4, name="last")
        sb = self.o["barrier"]
        self.o["barrier"] = False
        self.iteration(False, False, True, 0, None, False, False, 0, name="post")
        self.o["barrier"] = sb

    def epilogue(self):
        a = self.a
        a.c("==== epilogue")
        self.stamp(3)
        a.e(f"s_lshl_b32 s{S_T0}, s{S_W}, 13")
        a.e(f"s_add_u32 s{S_T0}, s{S_T0}, {LDS_PARK}")
        a.e(f"v_add_u32 v{V_T0}, s{S_T0}, v{V_L16}")
        for s in range(8):
            a.e(f"ds_read_b128 {vr(V_Q+4*s,4)}, v{V_T0} offset:{s*1024}")
        self.xlane("v_add_f32", V_L, [V_T2, V_T3])
        a.e(f"s_sub_u32 s{S_T1}, s{S_VRD}, 16384")
        a.e(f"s_add_u32 s{S_T1}, s{S_T1}, {LDS_V - LDS_PARK}")
        a.e(f"s_add_u32 s{S_T1}, s{S_T1}, s{S_T0}")
        a.e(f"s_cmp_eq_u32 s{S_G}, 0")
        a.e(f"s_cselect_b32 s{S_XOUT}, s{S_T0}, s{S_T1}")
        a.e(f"s_cselect_b32 s{S_XIN}, s{S_T1}, s{S_T0}")
        a.e(f"v_add_u32 v{V_T0}, s{S_XOUT}, v{V_L16}")
        a.e(f"v_add_u32 v{V_T1}, s{S_XIN}, v{V_L16}")
        a.e(f"s_lshl_b32 s{S_T0}, s{S_WV}, 10")
        a.e(f"s_add_u32 s{S_T0}, s{S_T0}, {LDS_SPARE}")
        a.e(f"s_xor_b32 s{S_T1}, s{S_T0}, 4096")
        a.e(f"v_add_u32 v{V_T3}, s{S_T1}, v{V_L16}")
        a.e(f"v_add_u32 v{V_T2}, s{S_T0}, v{V_L16}")
        a.e(f"ds_write_b128 v{V_T2}, {vr(V_M[0],4)}")
        a.e("s_waitcnt lgkmcnt(0)")
        a.e("s_barrier")
        for i in range(8):
            a.e(f"ds_write_b128 v{V_T0}, {vr(V_O+32+4*i,4)} offset:{i*1024}")
        a.e(f"ds_read_b128 {vr(V_E,4)}, v{V_T3}")
        a.e("s_waitcnt lgkmcnt(0)")
        a.e("s_barrier")
        X = V_S[0]
        for i in range(8):
            a.e(f"ds_read_b128 {vr(X+4*i,4)}, v{V_T1} offset:{i*1024}")
        so = [V_E + 4, V_E + 5]; sp = [V_E + 6, V_E + 7]
        tt = [V_T2, V_T3]
        for u in range(2):
            mp = V_E + 2 * u
            a.e(f"v_max_f32 v{tt[u]}, v{V_M[u]}, v{mp}")
            a.e(f"v_sub_f32 v{so[u]}, v{V_M[u]}, v{tt[u]}")
            a.e(f"v_sub_f32 v{sp[u]}, v{mp}, v{tt[u]}")
        for u in range(2):
            a.e(f"v_exp_f32 v{so[u]}, v{so[u]}")
            a.e(f"v_exp_f32 v{sp[u]}, v{sp[u]}")
        a.e("s_nop 0")
        for u in range(2):
            lp = V_E + 2 * u + 1
            a.e(f"v_mul_f32 v{tt[u]}, v{V_L[u]}, v{so[u]}")
            a.e(f"v_fmac_f32 v{tt[u]}, v{lp}, v{sp[u]}")
        for u in range(2):
            a.e(f"v_rcp_f32 v{tt[u]}, v{tt[u]}")
        a.e("s_nop 0")
        for u in range(2):
            a.e(f"v_mul_f32 v{so[u]}, v{so[u]}, v{tt[u]}")
            a.e(f"v_mul_f32 v{sp[u]}, v{sp[u]}, v{tt[u]}")
        for i in range(32):
            u = (i >> 2) & 1
            a.e(f"v_mul_f32 v{V_O+i}, v{V_O+i}, v{so[u]}")
        for i in range(32):
            u = (i >> 2) & 1
            if i % 4 == 0:
                a.e(f"s_waitcnt lgkmcnt({7 - i//4})")
            a.e(f"v_fmac_f32 v{V_O+i}, v{X+i}, v{sp[u]}")
        a.e(f"s_lshl_b32 s{S_T0}, s{S_QB}, 20")
        a.e(f"s_add_u32 s{S_T0}, s{S_T0}, s{S_CSOFF}")
        a.e(f"s_add_u32 s{S_T1}, s{S_T0}, 131072")
        for c in range(2):
            for u in range(2):
                dst = V_O + 32 + (c * 2 + u) * 4
                for h in range(2):
                    src = V_O + ((2 * c + h) * 2 + u) * 4
                    a.e(f"v_cvt_pk_bf16_f32 v{dst+2*h}, v{src}, v{src+1}")
                    a.e(f"v_cvt_pk_bf16_f32 v{dst+2*h+1}, v{src+2}, v{src+3}")
                a.e(f"buffer_store_dwordx4 {vr(dst,4)}, v{V_L16}, {sr(S_CSRD,4)}, s{S_T0 if u == 0 else S_T1} offen offset:{c*1024}")
        self.stamp(4)
        self.q.drain()


def gen_attn_kernel(a, name="attn_kernel", D=4, opts=None):
    g = AttnGen(a, D, opts)
    kernel_begin(a, name)
    lend = name + "_end"
    a.e("s_cmp_ge_u32 s2, 256")
    a.e(f"s_cbranch_scc1 {lend}")
    a.e(f"s_load_dwordx2 {sr(S_WS,2)}, s[0:1], 96")
    if g.o.get("prologue"):
        a.e("s_load_dwordx2 s[60:61], s[0:1], 16")
        a.e("s_load_dwordx4 s[64:67], s[0:1], 56")
    if g.o.get("stamp"):
        a.e("s_memtime s[96:97]")
        a.e("s_memrealtime s[98:99]")
    a.e(f"v_lshrrev_b32 v{V_T0}, 6, v0")
    a.e("s_nop 0")
    a.e(f"v_readfirstlane_b32 s{S_WV}, v{V_T0}")
    a.e(f"v_and_b32 v{V_T1}, 63, v0")
    a.e(f"v_lshlrev_b32 v{V_L16}, 4, v{V_T1}")
    a.e(f"s_and_b32 s{S_W}, s{S_WV}, 3")
    a.e(f"s_lshr_b32 s{S_G}, s{S_WV}, 2")
    a.e(f"s_and_b32 s{S_T0}, s2, 7")
    a.e(f"s_lshl_b32 s{S_T0}, s{S_T0}, 2")
    a.e(f"s_lshr_b32 s{S_T1}, s2, 6")
    a.e(f"s_add_u32 s{S_HEAD}, s{S_T0}, s{S_T1}")
    a.e(f"s_bfe_u32 s{S_PAIR}, s2, 0x30003")
    a.e("s_waitcnt lgkmcnt(0)")
    def srd(d, off_s, const, size):
        a.e(f"s_add_u32 s{d}, s{S_WS}, {const}")
        a.e(f"s_addc_u32 s{d+1}, s{S_WS+1}, 0")
        if off_s is not None:
            a.e(f"s_add_u32 s{d}, s{d}, s{off_s}")
            a.e(f"s_addc_u32 s{d+1}, s{d+1}, 0")
        a.e(f"s_and_b32 s{d+1}, s{d+1}, 0xffff")
        a.e(f"s_mov_b32 s{d+2}, {size}")
        a.e(f"s_mov_b32 s{d+3}, 0x20000")
    a.e(f"s_lshl_b32 s{S_T0}, s{S_HEAD}, 19")
    srd(S_KSRD, S_T0, WS_KF, 1 << 19)
    srd(S_VSRD, S_T0, WS_VF, 1 << 19)
    if not g.o.get("prologue"):
        srd(S_QSRD, S_T0, WS_QF, 1 << 19)
    srd(S_CSRD, None, WS_CTX, 16 << 20)
    a.e(f"s_lshl_b32 s{S_T0}, s{S_G}, 13")
    a.e(f"v_add_u32 v{V_KB}, s{S_T0}, v{V_L16}")
    a.e(f"s_mul_i32 s{S_T1}, s{S_G}, 12288")
    a.e(f"s_add_u32 s{S_T1}, s{S_T1}, {LDS_V}")
    a.e(f"v_add_u32 v{V_VB0}, s{S_T1}, v{V_L16}")
    a.e(f"s_lshl_b32 s{S_T1}, s{S_G}, 12")
    a.e(f"s_add_u32 s{S_T1}, s{S_T1}, {LDS_V}")
    a.e(f"v_add_u32 v{V_VB1}, s{S_T1}, v{V_L16}")
    a.e(f"v_and_b32 v{V_T0}, 15, v{V_T1}")
    a.e(f"v_lshrrev_b32 v{V_T2}, 4, v{V_T1}")
    a.e(f"v_lshlrev_b32 v{V_T3}, 2, v{V_T2}")
    a.e(f"v_sub_u32 v{V_MB}, v{V_T0}, v{V_T3}")
    a.e(f"v_mov_b32 v{V_NINF}, 0xff800000")
    a.e(f"s_lshl_b32 s{S_CSOFF}, s{S_W}, 18")
    a.e(f"s_lshl_b32 s{S_T0}, s{S_HEAD}, 12")
    a.e(f"s_add_u32 s{S_CSOFF}, s{S_CSOFF}, s{S_T0}")
    a.e(f"s_lshl_b32 s{S_T0}, s{S_G}, 11")
    a.e(f"s_add_u32 s{S_CSOFF}, s{S_CSOFF}, s{S_T0}")
    a.e(f"s_mov_b32 s{S_THR}, {g.o.get('thr', '0x4b800000')}")
    a.e(f"s_lshl_b32 s{S_T2}, s{S_WV}, 11")
    a.e(f"s_mov_b32 s{S_KCUR}, s{S_T2}")
    a.e(f"s_mov_b32 s{S_VCUR}, s{S_T2}")
    a.e(f"s_sub_u32 s{S_QB}, 15, s{S_PAIR}")
    a.e(f"s_lshl_b32 s{S_T0}, s{S_QB}, 15")
    a.e(f"s_add_u32 s{S_T0}, s{S_T0}, 32768")
    a.e(f"s_add_u32 s{S_KWRAP}, s{S_T0}, s{S_T2}")
    a.e(f"s_mov_b32 s{S_VWRAP}, s{S_KWRAP}")
    a.e(f"s_add_u32 s{S_KDST0}, s{S_T2}, {LDS_K}")
    a.e(f"s_mov_b32 s{S_KDST}, s{S_KDST0}")
    a.e(f"s_add_u32 s{S_KDSTEND}, s{S_KDST0}, 49152")
    a.e(f"s_add_u32 s{S_VDST0}, s{S_T2}, {LDS_V}")
    a.e(f"s_mov_b32 s{S_VDST}, 0")
    a.e(f"s_mov_b32 s{S_KRD}, 32768")
    a.e(f"s_mov_b32 s{S_VRD}, 49152")
    a.e(f"s_mov_b32 s{S_PASS}, 0")
    if g.o.get("prio"):
        lp = name + "_noprio"
        a.e(f"s_cmp_eq_u32 s{S_G}, {g.o['prio'] - 1}")
        a.e(f"s_cbranch_scc0 {lp}")
        a.e("s_setprio 1")
        a.label(lp)
    if g.o.get("prologue"):
        from gen_pro import prologue
        prologue(a, g, name)
    else:
        a.e(f"s_lshl_b32 s{S_T0}, s{S_QB}, 2")
        a.e(f"s_add_u32 s{S_T0}, s{S_T0}, s{S_W}")
        a.e(f"s_lshl_b32 s{S_T0}, s{S_T0}, 13")
        for s in range(8):
            a.e(f"s_add_u32 s{S_T1}, s{S_T0}, {s*1024}")
            a.e(f"buffer_load_dwordx4 {vr(V_Q+4*s,4)}, v{V_L16}, {sr(S_QSRD,4)}, s{S_T1} offen")
        a.e(f"s_lshl_b32 s{S_T0}, s{S_PAIR}, 2")
        a.e(f"s_add_u32 s{S_T0}, s{S_T0}, s{S_W}")
        a.e(f"s_lshl_b32 s{S_T0}, s{S_T0}, 13")
        a.e(f"s_lshl_b32 s{S_T1}, s{S_G}, 12")
        a.e(f"s_add_u32 s{S_T0}, s{S_T0}, s{S_T1}")
        a.e(f"s_lshl_b32 s{S_XIN}, s{S_W}, 13")
        a.e(f"s_add_u32 s{S_XIN}, s{S_XIN}, s{S_T1}")
        a.e(f"s_add_u32 m0, s{S_XIN}, {LDS_PARK}")
        a.e("s_nop 0")
        for s in range(4):
            a.e(f"buffer_load_dwordx4 v{V_L16}, {sr(S_QSRD,4)}, s{S_T0} offen offset:{s*1024} lds")
        for grp in [g.dma_k(), g.dma_k(), g.dma_v(), g.dma_k(), g.dma_v()]:
            for gg in grp:
                for s in gg:
                    a.e(s)
    lq = name + "_qblock"
    g.lq2 = name + "_qblock2"
    def qsetup():
        a.e(f"s_lshl_b32 s{S_D}, s{S_QB}, 2")
        a.e(f"s_add_u32 s{S_D}, s{S_D}, s{S_W}")
        a.e(f"s_sub_u32 s{S_D}, s{S_D}, s{S_G}")
        a.e(f"s_lshl_b32 s{S_D}, s{S_D}, 5")
        a.e(f"s_mov_b32 s{S_CNT}, s{S_QB}")
    if g.o.get("prologue"):
        qsetup()
        a.e(f"s_branch {g.lq2}")
    a.label(lq)
    qsetup()
    g.qblock()
    g.epilogue()
    a.e(f"s_cmp_eq_u32 s{S_PASS}, 1")
    a.e(f"s_cbranch_scc1 {lend}")
    a.e(f"s_mov_b32 s{S_PASS}, 1")
    a.e(f"s_mov_b32 s{S_QB}, s{S_PAIR}")
    a.e(f"s_mov_b32 s{S_KWRAP}, -1")
    a.e(f"s_mov_b32 s{S_VWRAP}, -1")
    a.e(f"s_branch {lq}")
    for blk in g.ool:
        blk()
    a.label(lend)
    if g.o.get("stamp"):
        a.e("s_cmp_ge_u32 s2, 256")
        a.e(f"s_cbranch_scc1 {lend}2")
        a.e("s_memtime s[64:65]")
        a.e("s_memrealtime s[66:67]")
        a.e("s_waitcnt lgkmcnt(0)")
        a.e("s_sub_u32 s64, s64, s96")
        a.e("s_sub_u32 s66, s66, s98")
        a.e("v_mov_b32 v20, s64")
        a.e("v_mov_b32 v21, s66")
        a.e("v_mov_b32 v22, s98")
        a.e("v_mov_b32 v23, 0")
        a.e(f"s_add_u32 s{S_QSRD}, s{S_WS}, {101*MB}")
        a.e(f"s_addc_u32 s{S_QSRD+1}, s{S_WS+1}, 0")
        a.e(f"s_and_b32 s{S_QSRD+1}, s{S_QSRD+1}, 0xffff")
        a.e(f"s_mov_b32 s{S_QSRD+2}, {1<<20}")
        a.e(f"s_lshl_b32 s{S_T0}, s2, 3")
        a.e(f"s_add_u32 s{S_T0}, s{S_T0}, s{S_WV}")
        a.e(f"s_lshl_b32 s{S_T0}, s{S_T0}, 4")
        a.e("v_mov_b32 v24, 0")
        a.e(f"buffer_store_dwordx4 v[20:23], v24, {sr(S_QSRD,4)}, s{S_T0} offen")
        a.e(f"s_lshl_b32 s{S_T0}, s{S_T0}, 2")
        a.e(f"s_add_u32 s{S_T0}, s{S_T0}, 65536")
        for k in range(10):
            a.e(f"s_sub_u32 s{76+2*k}, s{76+2*k}, s96")
            a.e(f"v_mov_b32 v{32+k}, s{76+2*k}")
        for k in range(3):
            a.e(f"buffer_store_dwordx4 v[{32+4*k}:{35+4*k}], v24, {sr(S_QSRD,4)}, s{S_T0} offen offset:{16*k}")
        a.label(lend + "2")
    a.e("s_endpgm")
    kernel_desc(a, name, 256, 102)


if __name__ == "__main__":
    import sys, json
    variants = {
        "sp": dict(D=4, opts=dict(stamp=True, dspread=(1, 5, 9))),
        "reg": dict(D=4, opts=dict(stamp=True, dspread=(1, 5, 9), dmareg=1)),
        "dword": dict(D=4, opts=dict(stamp=True, dspread=(1, 5, 9), dmahalf=1)),
        "nodma": dict(D=4, opts=dict(stamp=True, dma=False)),
        "noreads": dict(D=4, opts=dict(stamp=True, dspread=(1, 5, 9), reads=False)),
        "novalu": dict(D=4, opts=dict(stamp=True, dspread=(1, 5, 9), valu=False, check=False)),
        "nodma_noreads": dict(D=4, opts=dict(stamp=True, dma=False, reads=False)),
        "sp_d8": dict(D=8, opts=dict(stamp=True, dspread=(1, 3, 5))),
    }
    for n, v in variants.items():
        a = Asm()
        a.raw(f"; @launch kernel=attn_kernel grid=(256,1,1) block=(512,1,1) lds={LDS_TOTAL}")
        a.raw('.amdgcn_target "amdgcn-amd-amdhsa--gfx950"')
        gen_attn_kernel(a, **v)
        open(f"a16_{n}.s", "w").write(a.text())
    import tarfile
    with tarfile.open("a16_all.tgz", "w:gz") as t:
        for n_ in variants: t.add(f"a16_{n_}.s")
    print(" ".join(f"a16_{n_}" for n_ in variants))
```

```python
from common import *
from gen_kv_v4 import ln_list

NSLOT = 6
SLOT = 16384
LDS_ST = NSLOT * SLOT
LDS_X = 4 * SLOT
KV_LDS = LDS_ST + 65536
KV_THREADS = 512

S_CKV, S_W, S_OUT, S_X, S_XN, S_SIDE, S_SOUT = 4, 8, 12, 16, 20, 24, 28
S_WS = 32
S_P0 = 34
S_WV, S_ROT, S_NT, S_T0, S_T1, S_T2 = 46, 47, 48, 49, 50, 51
S_XST, S_WDST, S_AOFF, S_OOFF, S_ISV = 52, 53, 54, 56, 57
S_SSRC, S_STG, S_SOOFF, S_SSTR, S_XOFF, S_XNOFF = 58, 59, 60, 61, 62, 63
S_T3, S_T4 = 64, 65
S_KJ = {0: 94, 4: 95}
S_MT, S_PFA, S_PFW = 55, 84, 85
S_CJ = {0: 88, 4: 89}

V_L16 = 1
V_DW, V_DA, V_AR = 2, 4, 8
V_TR = [[10, 11], [12, 13]]
V_LT = 14
V_T0, V_T1, V_T2, V_T3 = 14, 15, 16, 17
V_LN = 0
V_X = 19
V_X = 20
V_PK = 28
V_WF = 44
V_A = 64
V_ACC = 192


def gen_kv_kernel(a, name="kv_kernel", opts=None):
    o = dict(stamp=False, D=5, st="", starts=(0, 4, 20, 36), lnstart=36, pace=6, rot=True, fast=48)
    if opts:
        o.update(opts)
    ST = o["st"]
    D = o["D"]
    st0 = o["starts"]
    blocks = []
    for tau in range(st0[3] + 16):
        for q in range(4):
            if 0 <= tau - st0[q] < 16:
                blocks.append((q, tau - st0[q]))
    assert len(blocks) == 64
    quads = []
    for Q in range(16):
        b = blocks[4 * Q:4 * Q + 4]
        if b[1][0] == b[0][0]:
            assert all(b[j] == (b[0][0], b[0][1] + j) for j in range(4))
            pat = 0
        else:
            pat = b[0][1] - b[1][1]
            assert pat == 4
            assert b[1][0] == b[0][0] + 1 and b[2] == (b[0][0], b[0][1] + 1) and b[3] == (b[1][0], b[1][1] + 1)
        quads.append((b[0][0], b[0][1], pat))
    seq = []
    for Q in range(14):
        for j in range(4):
            for ntl in range(4):
                seq.append((Q, j, ntl) + blocks[4 * Q + j])
    for ntl in range(4):
        for Q in (14, 15):
            for j in range(4):
                seq.append((Q, j, ntl) + blocks[4 * Q + j])
    N = len(seq)
    first_use = {}; qfirst = {}
    for i, s in enumerate(seq):
        first_use.setdefault(s[4] >> 1, i)
        qfirst.setdefault(s[0], i)

    kernel_begin(a, name)
    lend = name + "_end"
    a.e("s_cmp_ge_u32 s2, 256")
    a.e(f"s_cbranch_scc1 {lend}")
    a.e(f"s_load_dwordx4 {sr(S_P0+2,4)}, s[0:1], 0")
    a.e(f"s_load_dwordx4 {sr(S_P0+6,4)}, s[0:1], 24")
    a.e(f"s_load_dwordx2 {sr(S_WS,2)}, s[0:1], 96")
    a.e(f"s_load_dwordx2 {sr(S_P0,2)}, s[0:1], 40")
    a.e(f"s_load_dwordx2 {sr(S_P0+10,2)}, s[0:1], 72")
    if o["stamp"]:
        stamp_begin(a)
    a.e(f"v_lshrrev_b32 v{V_T0}, 6, v0")
    a.e(f"v_and_b32 v{V_LN}, 63, v0")
    a.e(f"v_readfirstlane_b32 s{S_WV}, v{V_T0}")
    a.e(f"v_lshlrev_b32 v{V_L16}, 4, v{V_LN}")
    a.e(f"s_lshr_b32 s{S_T2}, s2, 5")
    a.e(f"s_mov_b32 s{S_MT}, s{S_T2}")
    a.e(f"s_bfe_u32 s{S_ISV}, s2, 0x10004")
    a.e(f"s_and_b32 s{S_T0}, s2, 7")
    a.e(f"s_lshl_b32 s{S_T0}, s{S_T0}, 1")
    a.e(f"s_bfe_u32 s{S_T1}, s2, 0x10003")
    a.e(f"s_add_u32 s{S_NT}, s{S_T0}, s{S_T1}")
    if o["rot"]:
        a.e(f"s_bfe_u32 s{S_ROT}, s2, 0x20003")
        a.e(f"s_lshl_b32 s{S_ROT}, s{S_ROT}, 1")
        a.e(f"s_add_u32 s{S_ROT}, s{S_ROT}, s{S_T2}")
        a.e(f"s_and_b32 s{S_ROT}, s{S_ROT}, 7")
    else:
        a.e(f"s_mov_b32 s{S_ROT}, 0")
    a.e(f"v_lshrrev_b32 v{V_T0}, 3, v{V_LN}")
    a.e(f"v_lshrrev_b32 v{V_T1}, 4, v{V_LN}")
    a.e(f"v_and_b32 v{V_T2}, 7, v{V_LN}")
    a.e(f"v_xor_b32 v{V_T2}, v{V_T2}, v{V_T1}")
    a.e(f"v_lshlrev_b32 v{V_T2}, 4, v{V_T2}")
    a.e(f"v_lshl_add_u32 v{V_DA}, v{V_T0}, 10, v{V_T2}")
    a.e(f"v_xor_b32 v{V_T0}, 64, v{V_DA}")
    a.e(f"v_add_u32 v{V_DA+1}, {8192-1024}, v{V_T0}")
    a.e(f"v_add_u32 v{V_DA+2}, {2*(8192-1024)}, v{V_DA}")
    a.e(f"v_add_u32 v{V_DA+3}, {3*(8192-1024)}, v{V_T0}")
    CB, R4 = V_X, V_X + 1
    a.e(f"v_bfe_u32 v{V_T0}, v{V_LN}, 4, 1")
    a.e(f"v_bfe_u32 v{V_T1}, v{V_LN}, 2, 2")
    a.e(f"v_bfe_u32 v{V_T2}, v{V_LN}, 1, 1")
    a.e(f"v_xor_b32 v{V_T2}, v{V_T2}, v{V_T0}")
    a.e(f"v_and_b32 v{V_T3}, 1, v{V_LN}")
    a.e(f"v_lshl_add_u32 v{V_T2}, v{V_T2}, 1, v{V_T3}")
    a.e(f"v_lshrrev_b32 v{V_T3}, 5, v{V_LN}")
    a.e(f"v_lshl_add_u32 v{V_T2}, v{V_T3}, 2, v{V_T2}")
    a.e(f"v_lshlrev_b32 v{CB}, 4, v{V_T2}")
    a.e(f"v_lshl_add_u32 v{V_T3}, v{V_T0}, 3, v{V_T1}")
    a.e(f"v_lshl_add_u32 v{V_DW}, v{V_T3}, 13, v{CB}")
    a.e(f"v_add_u32 v{V_DW+1}, {16*8192 - 1024}, v{V_DW}")
    a.e(f"v_lshl_add_u32 v{R4}, v{V_T0}, 2, v{V_T1}")
    a.e(f"s_lshr_b32 s{S_T0}, s{S_WV}, 1")
    a.e(f"s_lshl_b32 s{S_T1}, s{S_ROT}, 1")
    a.e(f"s_add_u32 s{S_KJ[0]}, s{S_T0}, s{S_T1}")
    a.e(f"s_and_b32 s{S_T3}, s{S_WV}, 1")
    a.e(f"s_lshl_b32 s{S_T3}, s{S_T3}, 15")
    a.e(f"s_lshl_b32 s{S_CJ[0]}, s{S_NT}, 9")
    a.e(f"s_add_u32 s{S_CJ[0]}, s{S_CJ[0]}, s{S_T3}")
    a.e(f"s_lshl_b32 s{S_WDST}, s{S_WV}, 11")
    a.e(f"s_lshl_b32 s{S_STG}, s{S_WV}, 13")
    a.e(f"s_add_u32 s{S_STG}, s{S_STG}, {LDS_ST}")
    a.e(f"s_lshl_b32 s{S_AOFF}, s{S_T2}, 3")
    a.e(f"s_add_u32 s{S_AOFF}, s{S_AOFF}, s{S_WV}")
    a.e(f"s_lshl_b32 s{S_OOFF}, s{S_AOFF}, 13")
    a.e(f"s_lshl_b32 s{S_AOFF}, s{S_AOFF}, 15")
    a.e("s_waitcnt lgkmcnt(0)")
    srd_from(a, S_CKV, S_P0 + 4, size=2048 * 1024)
    a.e(f"s_cmp_eq_u32 s{S_ISV}, 0")
    a.e(f"s_cselect_b32 s{S_T3}, s{S_P0+6}, s{S_P0+8}")
    a.e(f"s_cselect_b32 s{S_T4}, s{S_P0+7}, s{S_P0+9}")

    def dma_w(Q):
        q0, ks0, pat = quads[Q]
        return [([f"s_add_u32 s{S_T0}, s{S_KJ[pat]}, {ks0}",
                  f"s_and_b32 s{S_T0}, s{S_T0}, 15",
                  f"s_lshl_b32 s{S_T0}, s{S_T0}, 18",
                  f"s_add_u32 s{S_T0}, s{S_T0}, s{S_CJ[pat]}",
                  f"s_add_u32 m0, s{S_WDST}, {(Q % NSLOT)*SLOT}",
                  f"s_add_u32 s{S_T0}, s{S_T0}, {q0*128}",
                  f"buffer_load_dwordx4 v{V_DW}, {sr(S_W,4)}, s{S_T0} offen lds"], ("W", Q)),
                ([f"buffer_load_dwordx4 v{V_DW+1}, {sr(S_W,4)}, s{S_T0} offen offset:1024 lds"], ("W", Q))]
    abuf = {0: 0, 1: 1, 2: None, 3: 0, 4: 1, 5: 0, 6: 1, 7: 0}
    def dma_a(c):
        ops = []
        for rg in range(4):
            op = []
            if rg == 0:
                op += [f"s_add_u32 s{S_T0}, s{S_ROT}, {c}",
                       f"s_and_b32 s{S_T0}, s{S_T0}, 7",
                       f"s_lshl_b32 s{S_T0}, s{S_T0}, 7"]
                op.append(f"s_mov_b32 m0, s{S_XST}" if abuf[c] is None else f"s_add_u32 m0, s{S_STG}, {abuf[c]*4096}")
                op.append(f"s_add_u32 s{S_T0}, s{S_T0}, s{S_AOFF}")
            op.append(f"buffer_load_dwordx4 v{V_DA+rg}, {sr(S_CKV,4)}, s{S_T0} offen offset:{rg*1024} lds")
            ops.append((op, ("A", c)))
        return ops
    def emit_now(ops):
        for op, tag in ops:
            for s in op:
                a.e(s)
    pre = []
    x = dma_a(0); emit_now(x); pre += x
    srd_from(a, S_W, S_T3, size=512 * 8192)
    x = dma_w(0); emit_now(x); pre += x
    PFD = V_PK + 8
    if o.get("pf"):
        a.e(f"s_bfe_u32 s{S_T2}, s2, 0x20003")
        a.e(f"s_lshl_b32 s{S_PFA}, s{S_MT}, 2")
        a.e(f"s_add_u32 s{S_PFA}, s{S_PFA}, s{S_T2}")
        a.e(f"s_lshl_b32 s{S_PFA}, s{S_PFA}, 16")
        a.e(f"s_lshl_b32 s{S_T2}, s{S_WV}, 7")
        a.e(f"s_add_u32 s{S_PFA}, s{S_PFA}, s{S_T2}")
        a.e(f"v_lshlrev_b32 v{PFD+2}, 10, v{V_LN}")
        a.e(f"s_lshl_b32 s{S_PFW}, s{S_MT}, 1")
        a.e(f"s_add_u32 s{S_PFW}, s{S_PFW}, s{S_WV}")
        a.e(f"s_lshl_b32 s{S_PFW}, s{S_PFW}, 18")
        a.e(f"s_lshl_b32 s{S_T2}, s{S_NT}, 9")
        a.e(f"s_add_u32 s{S_PFW}, s{S_PFW}, s{S_T2}")
        a.e(f"s_cmp_lt_u32 s{S_WV}, 2")
        a.e(f"s_cselect_b32 s{S_PFW}, s{S_PFW}, 0x40000000")
        a.e(f"v_lshrrev_b32 v{PFD+3}, 1, v{V_LN}")
        a.e(f"v_and_b32 v{PFD+4}, 1, v{V_LN}")
        a.e(f"v_lshlrev_b32 v{PFD+4}, 7, v{PFD+4}")
        a.e(f"v_lshl_add_u32 v{PFD+3}, v{PFD+3}, 13, v{PFD+4}")
        x = [([f"buffer_load_dword v{PFD}, v{PFD+2}, {sr(S_CKV,4)}, s{S_PFA} offen"], "P"),
             ([f"buffer_load_dword v{PFD+1}, v{PFD+3}, {sr(S_W,4)}, s{S_PFW} offen"], "P")]
        emit_now(x); pre += x
    a.e(f"s_lshr_b32 s{S_T2}, s{S_WV}, 2")
    a.e(f"s_add_u32 s{S_KJ[4]}, s{S_T2}, s{S_T1}")
    a.e(f"s_bfe_u32 s{S_T2}, s{S_WV}, 0x10001")
    a.e(f"s_mul_i32 s{S_T3}, s{S_T2}, 12")
    a.e(f"s_add_u32 s{S_KJ[4]}, s{S_KJ[4]}, s{S_T3}")
    a.e(f"s_lshl_b32 s{S_T2}, s{S_T2}, 7")
    a.e(f"s_add_u32 s{S_CJ[4]}, s{S_CJ[0]}, s{S_T2}")
    a.e(f"s_lshl_b32 s{S_XST}, s{S_WV}, 12")
    a.e(f"s_add_u32 s{S_XST}, s{S_XST}, {LDS_X}")
    x = dma_a(1); emit_now(x); pre += x
    AX = V_PK
    a.e(f"v_and_b32 v{V_T0}, 15, v{V_LN}")
    a.e(f"v_lshrrev_b32 v{V_T1}, 4, v{V_LN}")
    a.e(f"v_lshrrev_b32 v{V_T2}, 1, v{V_T0}")
    a.e(f"v_xor_b32 v{V_T1}, v{V_T1}, v{V_T2}")
    a.e(f"v_lshlrev_b32 v{V_T1}, 4, v{V_T1}")
    a.e(f"v_lshl_add_u32 v{V_T0}, v{V_T0}, 7, v{V_T1}")
    a.e(f"v_add_u32 v{V_AR}, s{S_STG}, v{V_T0}")
    a.e(f"v_xor_b32 v{V_AR+1}, 64, v{V_AR}")
    a.e(f"v_add_u32 v{AX}, s{S_XST}, v{V_T0}")
    a.e(f"v_xor_b32 v{AX+1}, 64, v{AX}")
    a.e(f"v_lshrrev_b32 v{V_T0}, 5, v{V_LN}")
    a.e(f"v_bfe_u32 v{V_T1}, v{V_LN}, 2, 3")
    a.e(f"v_lshlrev_b32 v{V_T1}, 6, v{V_T1}")
    a.e(f"v_lshl_add_u32 v{V_T0}, v{V_T0}, 10, v{V_T1}")
    a.e(f"v_bfe_u32 v{V_T1}, v{V_LN}, 4, 1")
    a.e(f"v_lshl_add_u32 v{V_T0}, v{V_T1}, 5, v{V_T0}")
    a.e(f"v_and_b32 v{V_T1}, 3, v{V_LN}")
    a.e(f"v_lshl_add_u32 v{V_TR[0][0]}, v{V_T1}, 3, v{V_T0}")
    a.e(f"v_xor_b32 v{V_TR[0][1]}, 32, v{V_TR[0][0]}")
    a.e(f"v_add_u32 v{V_TR[1][0]}, 49152, v{V_TR[0][0]}")
    a.e(f"v_add_u32 v{V_TR[1][1]}, 49152, v{V_TR[0][1]}")
    DS = V_PK + 4
    a.e(f"v_mul_u32_u24 v{DS}, 1280, v{R4}")
    a.e(f"v_add_u32 v{DS}, v{DS}, v{CB}")
    for hp in range(1, 4):
        a.e(f"v_add_u32 v{DS+hp}, {hp*(8*1280 - 1024)}, v{DS}")
    x = dma_a(2) + dma_w(1); emit_now(x); pre += x
    a.e(f"s_lshl_b32 s{S_T0}, s{S_NT}, 20")
    a.e(f"s_add_u32 s{S_OOFF}, s{S_OOFF}, s{S_T0}")
    a.e(f"v_cmp_gt_u32 vcc, 16, v{V_LN}")
    a.e(f"s_lshl_b32 s{S_T1}, s{S_ISV}, 24")
    srd_from(a, S_OUT, S_WS, WS_KF, S_T1, 16 << 20)
    srd_from(a, S_X, S_P0 + 2, size=2048 * 1280)
    srd_from(a, S_XN, S_WS, WS_XN, None, 2048 * 1280)
    a.e(f"s_lshl_b32 s{S_T0}, s2, 3")
    a.e(f"s_add_u32 s{S_T0}, s{S_T0}, s{S_WV}")
    a.e(f"s_mul_i32 s{S_XOFF}, s{S_T0}, 1280")
    a.e(f"s_lshr_b32 s{S_T1}, s{S_T0}, 4")
    a.e(f"s_mul_i32 s{S_XNOFF}, s{S_T1}, 20480")
    a.e(f"s_and_b32 s{S_T1}, s{S_T0}, 15")
    a.e(f"s_lshl_b32 s{S_T1}, s{S_T1}, 4")
    a.e(f"s_add_u32 s{S_XNOFF}, s{S_XNOFF}, s{S_T1}")
    a.e(f"s_mul_i32 s{S_T1}, s{S_T0}, 6554")
    a.e(f"s_lshr_b32 s{S_T1}, s{S_T1}, 16")
    a.e(f"s_mul_i32 s{S_T2}, s{S_T1}, 10")
    a.e(f"s_sub_u32 s{S_T0}, s{S_T0}, s{S_T2}")
    a.e(f"s_cmp_lt_u32 s{S_T1}, 128")
    a.e(f"s_cselect_b32 s{S_T3}, s{S_P0}, s{S_P0+10}")
    a.e(f"s_cselect_b32 s{S_T4}, s{S_P0+1}, s{S_P0+11}")
    a.e(f"s_mov_b32 s{S_T2}, {4096*1280}")
    a.e(f"s_cselect_b32 s{S_T2}, s{S_T2}, {1728*1280}")
    a.e(f"s_mov_b32 s{S_SSTR}, {128*1024}")
    a.e(f"s_cselect_b32 s{S_SSTR}, s{S_SSTR}, {54*1024}")
    a.e(f"s_cselect_b32 s{S_SOOFF}, 0, {WS_W2F - WS_WOF}")
    a.e(f"s_cmp_lt_u32 s{S_T1}, 182")
    a.e(f"s_cselect_b32 s{S_T2}, s{S_T2}, 0")
    srd_from(a, S_SIDE, S_T3, size=0)
    a.e(f"s_mov_b32 s{S_SIDE+2}, s{S_T2}")
    srd_from(a, S_SOUT, S_WS, WS_WOF, S_SOOFF, 0)
    a.e(f"s_mov_b32 s{S_SOUT+2}, s{S_T2}")
    a.e(f"s_and_b32 s{S_T1}, s{S_T1}, 127")
    a.e(f"s_mul_i32 s{S_SSRC}, s{S_T1}, 40960")
    a.e(f"s_lshl_b32 s{S_T2}, s{S_T0}, 7")
    a.e(f"s_add_u32 s{S_SSRC}, s{S_SSRC}, s{S_T2}")
    a.e(f"s_mul_i32 s{S_SOOFF}, s{S_T0}, s{S_SSTR}")
    a.e(f"s_lshl_b32 s{S_SOOFF}, s{S_SOOFF}, 2")
    a.e(f"s_lshl_b32 s{S_T1}, s{S_T1}, 10")
    a.e(f"s_add_u32 s{S_SOOFF}, s{S_SOOFF}, s{S_T1}")

    def side_loads():
        ops = []
        for hp in range(4):
            op = [f"s_add_u32 m0, s{S_STG}, 4096", "s_nop 0"] if hp == 0 else []
            op.append(f"buffer_load_dwordx4 v{DS+hp}, {sr(S_SIDE,4)}, s{S_SSRC} offen offset:{hp*1024} lds")
            ops.append((op, "S"))
        return ops

    def body(isv):
        vq = OpQ(); lq = OpQ()
        for op, tag in pre:
            vq.issue(tag)
        cur = []; pend = []
        def emit_one():
            if not cur:
                if not pend:
                    return False
                pend.sort(key=lambda x: x[0])
                cur.extend(pend.pop(0)[1])
            op, tag = cur.pop(0)
            if not (o.get("nodma") and tag[0] in o["nodma"]):
                for s in op:
                    a.e(s)
                vq.issue(tag)
            return True
        def vwait(tag):
            while any(t == tag for _, t in cur) or any(t == tag for _, g in pend for _, t in g):
                emit_one()
            w = vq.need(tag)
            if w is not None:
                a.e(f"s_waitcnt vmcnt({w})")
        def lwait(tag):
            w = lq.need(tag)
            if w is not None:
                a.e(f"s_waitcnt lgkmcnt({min(w, 15)})")
        def rd(i):
            Q, j, ntl, q, ks = seq[i]
            f = V_WF + 4 * (i % D)
            base = (Q % NSLOT) * SLOT + j * 4096 + (ntl >> 1) * 512
            win = 1 if base >= 49152 else 0
            for h in range(2):
                a.e(f"ds_read_b64_tr_b16 {vr(f+2*h,2)}, v{V_TR[win][ntl&1]} offset:{base + h*2048 - win*49152}")
                lq.issue(i)
        def rd_act(c, e_):
            if e_ == 0:
                vwait(("A", c))
            for t in range(2):
                r = V_A + ((2 * c + e_) * 2 + t) * 4
                if abuf[c] is None:
                    a.e(f"ds_read_b128 {vr(r,4)}, v{AX+e_} offset:{t*2048}")
                else:
                    a.e(f"ds_read_b128 {vr(r,4)}, v{V_AR+e_} offset:{abuf[c]*4096 + t*2048}")
                lq.issue(("A", c, e_))
        units = []
        stq = []
        npk = [0]
        tmp_busy = [False] * 4
        def out_unit(q, j, i):
            acc = V_ACC + (q & 1) * 32
            if isv:
                s0 = acc + j * 4; s1 = s0 + 16
                off = (q >> 1) * (1 << 19) + ((q & 1) * 4 + j) * 1024
            else:
                sp, t = j >> 1, j & 1
                s0 = acc + (t * 4 + 2 * sp) * 4; s1 = s0 + 4
                off = (q >> 1) * (1 << 19) + (t * 4 + (q & 1) * 2 + sp) * 1024
            tix = npk[0] & 3; npk[0] += 1
            dst = V_PK + 4 * tix
            units.append([i + 2, [f"v_cvt_pk_bf16_f32 v{dst}, v{s0}, v{s0+1}",
                                  f"v_cvt_pk_bf16_f32 v{dst+1}, v{s0+2}, v{s0+3}",
                                  f"v_cvt_pk_bf16_f32 v{dst+2}, v{s1}, v{s1+1}",
                                  f"v_cvt_pk_bf16_f32 v{dst+3}, v{s1+2}, v{s1+3}"],
                          [f"s_add_u32 s{S_T3}, s{S_OOFF}, {off}",
                           f"buffer_store_dwordx4 {vr(dst,4)}, v{V_L16}, {sr(S_OUT,4)}, s{S_T3} offen{ST}"], tix, False])
        last_store = [-100]
        def cvt_step(i, n):
            while n > 0 and units and units[0][0] <= i:
                u = units[0]
                if not u[4]:
                    if tmp_busy[u[3]]:
                        return
                    tmp_busy[u[3]] = True; u[4] = True
                a.e(u[1].pop(0)); n -= 1
                if not u[1]:
                    stq.append((i + 1, u[2], None, u[3]))
                    units.pop(0)
        def store_step(i, pace):
            if stq and stq[0][0] <= i and i - last_store[0] >= pace:
                _, ins, tag, tix = stq.pop(0)
                if tag is not None:
                    lwait(tag)
                for s_ in ins:
                    a.e(s_)
                vq.issue("O")
                if tix is not None:
                    tmp_busy[tix] = False
                last_store[0] = i
        ln = ln_list(V_X, V_LT) if not o.get("noln") else []
        XO, XO2 = V_LT, V_LT + 1
        ln += [f"v_lshrrev_b32 v{V_LT+2}, 2, v{V_LN}",
               f"v_and_b32 v{V_LT+3}, 3, v{V_LN}",
               f"v_lshlrev_b32 v{V_LT+3}, 8, v{V_LT+3}",
               f"v_lshl_add_u32 v{XO}, v{V_LT+2}, 10, v{V_LT+3}",
               f"v_mov_b32 v{V_LT+2}, 0x40000000",
               f"v_add_u32 v{V_LT+3}, 16384, v{XO}",
               f"v_cndmask_b32 v{XO2}, v{V_LT+2}, v{V_LT+3}, vcc"]
        ln_started = False
        nrd = 0
        act_at = {}
        for c in range(1, 8):
            for e_ in range(2):
                act_at[first_use[c] - D - 1 + e_] = (c, e_)
        side_rd = o.get("siderd", 164)
        SF = V_ACC + 32
        if o.get("pf"):
            pend.append((o.get("pf2", 40), [([f"buffer_load_dword v{PFD+1}, v{PFD+3}, {sr(S_W,4)}, s{S_PFW} offen offset:256"], "P")]))
        pend.append((32, dma_w(2)))
        pend.append((48, dma_w(3)))
        pend.append((o["lnstart"] - 30, [([f"buffer_load_dwordx4 {vr(V_X+4*h,4)}, v{V_L16}, {sr(S_X,4)}, s{S_XOFF} offen offset:{h*1024}"], "X") for h in range(2)]))
        if o["lnstart"] < 16:
            emit_one(); emit_one()
        rd_act(0, 0); rd_act(0, 1)
        stq_marks = (0, 1, 2, 4, 6, 8, 10, 12)
        for i, (Q, j, ntl, q, ks) in enumerate(seq):
            while nrd < min(N, i + D):
                Q2 = seq[nrd][0]
                if nrd == qfirst[Q2] and Q2 < 15:
                    vwait(("W", 15 if Q2 == 14 else Q2))
                    a.e("s_barrier")
                    if o["stamp"] and Q2 in stq_marks:
                        stamp_mid(a, stq_marks.index(Q2)); lq.drain()
                    if Q2 == 2:
                        pend.append((64, dma_w(4))); pend.append((80, dma_w(5)))
                    if Q2 >= 2 and Q2 + 4 < 16:
                        pend.append((qfirst[Q2 + 4], dma_w(Q2 + 4)))
                rd(nrd); nrd += 1
            if i in act_at:
                rd_act(*act_at[i])
            c = ks >> 1
            lwait(("A", c, ks & 1))
            if i == first_use[c]:
                lwait(("A", c, 1))
                nc = {0: 3, 1: 4, 3: 5, 4: 6, 5: 7}.get(c)
                if nc:
                    pend.append((first_use[nc], dma_a(nc)))
                if c == 6:
                    pend.append((100, side_loads()))
            lwait(i)
            f = V_WF + 4 * (i % D)
            for t in range(2):
                d = V_ACC + (q & 1) * 32 + (t * 4 + ntl) * 4
                x = V_A + (ks * 2 + t) * 4
                cc = d if ks > 0 else "0"
                if ks == 0:
                    assert not any((f", v{d}," in s_ or f", v{d+2}," in s_) for u in units for s_ in u[1]), (i, d)
                    assert not any(f"v[{d}:" in s_ for st_ in stq for s_ in st_[1]), (i, d)
                a.e(MF(d, x, f, cc) if isv else MF(d, f, x, cc))
                if t == 0:
                    if units:
                        assert not any(tg == "S" for _, tg in cur) and not any(tg == "S" for _, g in pend for _, tg in g)
                    cvt_step(i, 2)
                elif i >= o["lnstart"] and ln:
                    if not ln_started:
                        vwait("X")
                        ln_started = True
                    for _ in range(o.get("lnrate", 2)):
                        s_ = ln.pop(0)
                        a.e(s_)
                        if not ln or any(k in ln[0] for k in ("dpp", "permlane")) or any(k in s_ for k in ("sqrt", "rcp", "permlane")):
                            break
                    if not ln:
                        for h in range(2):
                            stq.append((i + 1, [f"buffer_store_dwordx4 {vr(V_X+4*h,4)}, v{XO2 if h else XO}, {sr(S_XN,4)}, s{S_XNOFF} offen{ST}"], None, None))
            if ks == 15:
                if isv:
                    out_unit(q, ntl, i)
                elif ntl & 1:
                    for t in range(2):
                        out_unit(q, (ntl >> 1) * 2 + t, i)
            if i % 2 == 0 or i < o["fast"]:
                emit_one()
            store_step(i, o["pace"])
            if i == side_rd:
                assert not ln
                assert not any(u[0] <= i for u in units)
                vwait("S")
                a.e(f"s_add_u32 s{S_T1}, s{S_STG}, 4096")
                a.e(f"v_add_u32 v{V_LT+2}, s{S_T1}, v{V_TR[0][0]}")
                a.e(f"v_add_u32 v{V_LT+3}, s{S_T1}, v{V_TR[0][1]}")
            if side_rd < i <= side_rd + 4:
                s_ = i - side_rd - 1
                for h in range(2):
                    a.e(f"ds_read_b64_tr_b16 {vr(SF+4*s_+2*h,2)}, v{V_LT+2+(s_&1)} offset:{h*2048 + (s_>>1)*512}")
                    lq.issue(("T", s_))
                stq.append((i + 4, [f"buffer_store_dwordx4 {vr(SF+4*s_,4)}, v{V_L16}, {sr(S_SOUT,4)}, s{S_SOOFF} offen{ST}",
                                    f"s_add_u32 s{S_SOOFF}, s{S_SOOFF}, s{S_SSTR}"], ("T", s_), None))
        assert not ln and not pend and not cur
        if o["stamp"]:
            stamp_mid(a, 8)
        a.e("s_nop 7")
        k = N + 10
        while units or stq:
            store_step(k, 0)
            cvt_step(k, 4)
            k += 1

    lv = name + "_v"; lside = name + "_done"
    a.e(f"s_cmp_eq_u32 s{S_ISV}, 1")
    a.e(f"s_cbranch_scc1 {lv}")
    body(False)
    a.e(f"s_branch {lside}")
    a.label(lv)
    body(True)
    a.label(lside)
    if o["stamp"]:
        a.e("s_waitcnt vmcnt(0)")
        stamp_end(a, S_WS, S_WV, 0)
        stamp_dump(a, 9)
    a.label(lend)
    a.e("s_endpgm")
    kernel_desc(a, name, 256, 102)


if __name__ == "__main__":
    variants = {"kv": {}, "kv_pf": dict(rot=False, pf=1), "kv_ln": dict(lnstart=4, lnrate=6), "kv_pfln": dict(rot=False, pf=1, lnstart=4, lnrate=6),
                "kv_pfln4": dict(rot=False, pf=1, lnstart=8, lnrate=4), "kv_rotpf": dict(rot=True, pf=1, lnstart=4, lnrate=6)}
    for n, v in variants.items():
        a = Asm()
        a.raw(f"; @launch kernel=kv_kernel grid=(256,1,1) block=({KV_THREADS},1,1) lds={KV_LDS}")
        a.raw('.amdgcn_target "amdgcn-amd-amdhsa--gfx950"')
        gen_kv_kernel(a, opts=dict(stamp=True, **v))
        open(n + ".s", "w").write(a.text())
    import tarfile
    with tarfile.open("kv_all.tgz", "w:gz") as t:
        for n in variants: t.add(n + ".s")
```

```python
from common import *
import math
OUT_GRID = 256
OUT_THREADS = 256
OUT_LDS = 122880
LOG2E = math.log2(math.e)

S_CTX, S_ACTS, S_WO, S_W2, S_XS, S_OS = 4, 8, 12, 16, 20, 24
S_WS = 32
S_P0 = 34
S_WV, S_T0, S_T1, S_T2, S_TT, S_CT = 40, 41, 42, 43, 44, 45
S_A = 46
S_B = 50
S_XO = 55
S_ROT = 56
V_L16, V_XO, V_RD = 1, 2, 3
V_WR = 4
V_T = 8
V_XD = 16
V_G = 28
V_S = 48
V_R = 68
V_F = 96
NG, NS = 14, 32
V_ROT = 88


def gen_out_kernel(a, name="out_kernel", opts=None):
    o = dict(stamp=False, P=6, st="")
    if opts:
        o.update(opts)
    P = o["P"]
    kernel_begin(a, name)
    lend = name + "_end"
    a.e("s_cmp_ge_u32 s2, 256")
    a.e(f"s_cbranch_scc1 {lend}")
    a.e(f"s_load_dwordx2 {sr(S_WS,2)}, s[0:1], 96")
    a.e(f"s_load_dwordx2 {sr(S_P0,2)}, s[0:1], 0")
    a.e(f"s_load_dwordx2 {sr(S_P0+2,2)}, s[0:1], 80")
    if o["stamp"]:
        stamp_begin(a)
    a.e(f"v_lshrrev_b32 v{V_T}, 6, v0")
    a.e(f"v_and_b32 v{V_T+1}, 63, v0")
    a.e(f"v_readfirstlane_b32 s{S_WV}, v{V_T}")
    a.e(f"v_lshlrev_b32 v{V_L16}, 4, v{V_T+1}")
    a.e(f"s_bfe_u32 s{S_T0}, s2, 0x20001")
    a.e(f"s_lshl_b32 s{S_T0}, s{S_T0}, 3")
    a.e(f"s_lshr_b32 s{S_T1}, s2, 5")
    a.e(f"s_add_u32 s{S_TT}, s{S_T0}, s{S_T1}")
    a.e(f"s_and_b32 s{S_T0}, s2, 1")
    a.e(f"s_lshl_b32 s{S_T0}, s{S_T0}, 2")
    a.e(f"s_bfe_u32 s{S_T1}, s2, 0x20003")
    a.e(f"s_add_u32 s{S_CT}, s{S_T0}, s{S_T1}")
    if o.get("same") == 1:
        a.e(f"s_mov_b32 s{S_TT}, 0")
        a.e(f"s_mov_b32 s{S_CT}, 0")
    if o.get("same") == 2:
        a.e(f"s_and_b32 s{S_TT}, s{S_TT}, 1")
        a.e(f"s_and_b32 s{S_CT}, s{S_CT}, 1")
    a.e(f"s_mul_i32 s{S_T2}, s{S_WV}, 14")
    a.e(f"s_cmp_eq_u32 s{S_WV}, 3")
    a.e(f"s_cselect_b32 s{S_T2}, 41, s{S_T2}")
    a.e(f"s_lshl_b32 s{S_T2}, s{S_T2}, 10")
    def set_offsets(nk, t2):
        for t in range(4):
            a.e(f"s_add_u32 s{S_T0}, s{S_WV}, {t}")
            a.e(f"s_and_b32 s{S_T0}, s{S_T0}, 3")
            a.e(f"s_lshl_b32 s{S_T1}, s{S_TT}, 2")
            a.e(f"s_add_u32 s{S_T0}, s{S_T0}, s{S_T1}")
            a.e(f"s_mul_i32 s{S_T0}, s{S_T0}, {nk*1024}")
            a.e(f"s_add_u32 s{S_A+t}, s{S_T0}, s{t2}")
        a.e(f"s_mul_i32 s{S_T0}, s{S_CT}, {5*nk*1024}")
        a.e(f"s_add_u32 s{S_T0}, s{S_T0}, s{t2}")
        for n in range(5):
            a.e(f"s_add_u32 s{S_B+n}, s{S_T0}, {n*nk*1024}")
    set_offsets(54, S_T2)
    a.e("s_waitcnt lgkmcnt(0)")
    srd_from(a, S_ACTS, S_WS, WS_ACT, None, 128 * 54 * 1024)
    srd_from(a, S_W2, S_WS, WS_W2F, None, 40 * 54 * 1024)

    def fr(k, i):
        b = k % (P + o.get("xb", 0))
        if b < 4:
            return vr(V_F + b * 40 + i * 4, 4)
        return ar(120 + (b - 4) * 36 + i * 4, 4)
    vq = OpQ(); lq = OpQ()
    def loads(k):
        ops = []
        isg = k < NG
        kk = k if isg else k - NG
        pre = []
        if k == NG - 1:
            pre += [f"s_cmp_ge_u32 s{S_WV}, 2", f"s_cselect_b32 s{S_T2}, 0x40000000, 0"]
            pre += [f"s_add_u32 s{S_B+n}, s{S_B+n}, s{S_T2}" for n in range(5)]
        for i in (4, 5, 6, 7, 8, 0, 1, 2, 3):
            srd = (S_ACTS if isg else S_CTX) if i < 4 else (S_W2 if isg else S_WO)
            so = S_A + i if i < 4 else S_B + i - 4
            if o.get("rot") and not isg:
                Wn = o["rot"]
                if i == 4:
                    pre = pre + [f"s_add_u32 s{S_T0}, s{S_ROT}, {kk}", f"s_and_b32 s{S_T0}, s{S_T0}, {Wn-1}",
                                 f"s_lshl_b32 s{S_T0}, s{S_T0}, 10", f"v_add_u32 v{V_ROT+(kk&1)}, s{S_T0}, v{V_L16}"]
                op = pre + [f"buffer_load_dwordx4 {fr(k,i)}, v{V_ROT+(kk&1)}, {sr(srd,4)}, s{so} offen"]
                if kk % Wn == Wn - 1:
                    op.append(f"s_add_u32 s{so}, s{so}, {Wn*1024}")
            else:
                op = pre + [f"buffer_load_dwordx4 {fr(k,i)}, v{V_L16}, {sr(srd,4)}, s{so} offen offset:{(kk&3)*1024}{o.get('ld','')}"]
                if kk & 3 == 3:
                    op.append(f"s_add_u32 s{so}, s{so}, 4096")
            pre = []
            ops.append((op, ("F", k)))
        return ops
    def emit(ops):
        for op, tag in ops:
            for s in op:
                a.e(s)
            vq.issue(tag)
    emit(loads(0))
    srd_from(a, S_CTX, S_WS, WS_CTX, None, 16 << 20)
    srd_from(a, S_WO, S_WS, WS_WOF, None, 40 * 128 * 1024)
    srd_from(a, S_XS, S_P0, size=2048 * 1280)
    srd_from(a, S_OS, S_P0 + 2, size=2048 * 1280)
    a.e(f"v_and_b32 v{V_T}, 15, v{V_T+1}")
    a.e(f"v_mul_u32_u24 v{V_T}, 1280, v{V_T}")
    a.e(f"v_lshrrev_b32 v{V_T+2}, 4, v{V_T+1}")
    a.e(f"v_lshl_add_u32 v{V_XO}, v{V_T+2}, 3, v{V_T}")
    a.e(f"s_lshl_b32 s{S_XO}, s{S_TT}, 2")
    a.e(f"s_add_u32 s{S_XO}, s{S_XO}, s{S_WV}")
    a.e(f"s_mul_i32 s{S_XO}, s{S_XO}, {16*1280}")
    a.e(f"s_mul_i32 s{S_T0}, s{S_CT}, 160")
    a.e(f"s_add_u32 s{S_XO}, s{S_XO}, s{S_T0}")
    if o.get("rot"):
        a.e(f"s_lshl_b32 s{S_T1}, s{S_CT}, 1")
        a.e(f"s_add_u32 s{S_T1}, s{S_T1}, s{S_TT}")
        a.e(f"s_and_b32 s{S_T1}, s{S_T1}, 7")
        a.e(f"s_mul_i32 s{S_ROT}, s{S_T1}, {o['rot']//8}")
    a.e(f"s_mul_i32 s{S_T0}, s{S_WV}, 15360")
    a.e(f"v_add_u32 v{V_RD}, s{S_T0}, v{V_L16}")
    for t in range(1, 4):
        a.e(f"s_add_u32 s{S_T0}, s{S_WV}, {t}")
        a.e(f"s_and_b32 s{S_T0}, s{S_T0}, 3")
        a.e(f"s_mul_i32 s{S_T0}, s{S_T0}, 15360")
        a.e(f"s_add_u32 s{S_T0}, s{S_T0}, {(t-1)*5120}")
        a.e(f"v_add_u32 v{V_WR+t-1}, s{S_T0}, v{V_L16}")
    for k in range(1, P):
        emit(loads(k))
    def acc(isg, t, n):
        if t == 0:
            return vr((V_G if isg else V_S) + n * 4, 4)
        return ar((0 if isg else 60) + ((t - 1) * 5 + n) * 4, 4)
    NK = NG + NS
    extra = {}
    def reduce_writes(isg):
        return [f"ds_write_b128 v{V_WR+t-1}, {acc(isg,t,n)} offset:{n*1024}" for t in range(1, 4) for n in range(5)]
    def silu_ops():
        L = []
        for n0 in range(0, 20, 4):
            r = [V_G + n0 + k for k in range(4)]
            L += [f"v_mul_f32 v{V_T+k}, {-LOG2E!r}, v{r[k]}" for k in range(4)]
            L += [f"v_exp_f32 v{V_T+k}, v{V_T+k}" for k in range(4)]
            L += [f"v_add_f32 v{V_T+k}, 1.0, v{V_T+k}" for k in range(4)]
            L += [f"v_rcp_f32 v{V_T+k}, v{V_T+k}" for k in range(4)]
            L += [f"v_mul_f32 v{r[k]}, v{r[k]}, v{V_T+k}" for k in range(4)]
        return L
    side = []
    for k in range(NK):
        isg = k < NG
        w = vq.need(("F", k))
        a.e(f"s_waitcnt vmcnt({w})")
        nxt = loads(k + P) if k + P < NK else []
        if k + P == NG:
            a.e(f"s_lshl_b32 s{S_T2}, s{S_WV}, 15")
            set_offsets(128, S_T2)
        if k == NG + 1:
            side += reduce_writes(True)
        if k == NG + 3:
            a.e("s_waitcnt lgkmcnt(0)")
            a.e("s_barrier")
        if NG + 3 <= k < NG + 6:
            j = k - NG - 3
            side += [f"ds_read_b128 {vr(V_R+4*n,4)}, v{V_RD} offset:{j*5120 + n*1024}" for n in range(5)]
            side += ["s_nop 0"] * 6 + ["s_waitcnt lgkmcnt(0)"]
            side += [f"v_add_f32 v{V_G+i}, v{V_G+i}, v{V_R+i}" for i in range(20)]
        if k == NG + 6:
            side += silu_ops()
            side += [f"v_add_u32 v{r}, 61440, v{r}" for r in (V_RD, V_WR, V_WR + 1, V_WR + 2)]
            for n in range(5):
                a.e(f"buffer_load_dwordx2 {vr(V_XD+2*n,2)}, v{V_XO}, {sr(S_XS,4)}, s{S_XO} offen offset:{n*32}")
                vq.issue("X")
        m = 0
        for n in range(5):
            for t in range(4):
                first = (k == 0 or k == NG)
                d = acc(isg, t, n)
                if not o.get("nomfma") or (o["nomfma"] == 2 and t & 1):
                    a.e(f"v_mfma_f32_16x16x32_bf16 {d}, {fr(k,4+n)}, {fr(k,t)}, {'0' if first else d}")
                m += 1
                for _ in range(2):
                    if side:
                        a.e(side.pop(0))
                if o.get("xb") and nxt and m % 2 == 1:
                    emit([nxt.pop(0)])
            if nxt and not o.get("xb"):
                emit([nxt.pop(0)])
        emit(nxt)
    assert not side
    if o["stamp"]:
        stamp_mid(a, 0)
    a.e("s_nop 7")
    for s in reduce_writes(False):
        a.e(s)
    a.e("s_waitcnt lgkmcnt(0)")
    a.e("s_barrier")
    for j in range(3):
        for n in range(5):
            a.e(f"ds_read_b128 {vr(V_F+(j*5+n)*4,4)}, v{V_RD} offset:{j*5120 + n*1024}")
    a.e("s_waitcnt vmcnt(0)")
    for n in range(5):
        if n == 0:
            a.e("s_waitcnt lgkmcnt(0)")
        for r in range(4):
            i = n * 4 + r
            a.e(f"v_add_f32 v{V_S+i}, v{V_S+i}, v{V_F+i}")
            a.e(f"v_add_f32 v{V_F+20+i}, v{V_F+20+i}, v{V_F+40+i}")
            src = V_XD + 2 * n + (r >> 1)
            a.e(f"v_and_b32 v{V_T+r}, 0xffff0000, v{src}" if r & 1 else f"v_lshlrev_b32 v{V_T+r}, 16, v{src}")
            a.e(f"v_add_f32 v{V_S+i}, v{V_S+i}, v{V_F+20+i}")
            a.e(f"v_fmac_f32 v{V_T+r}, v{V_S+i}, v{V_G+i}")
        a.e(f"v_cvt_pk_bf16_f32 v{V_XD+2*n}, v{V_T}, v{V_T+1}")
        a.e(f"v_cvt_pk_bf16_f32 v{V_XD+2*n+1}, v{V_T+2}, v{V_T+3}")
        a.e(f"buffer_store_dwordx2 {vr(V_XD+2*n,2)}, v{V_XO}, {sr(S_OS,4)}, s{S_XO} offen offset:{n*32}")
    if o["stamp"]:
        a.e("s_waitcnt vmcnt(0)")
        stamp_end(a, S_WS, S_WV, 2)
        stamp_dump(a, 1)
    a.label(lend)
    a.e("s_endpgm")
    kernel_desc(a, name, 256 + 192, 102, accum=256)
```

```python
import math
from common import OpQ, srd_from
from gen_attn16 import *

S_WQ, S_W1, S_B1, S_ACT = 60, 64, 68, 72
S_XNS = S_QSRD
S_QSRC, S_QDST, S_1SRC, S_1DST = 58, 59, 100, 101
S_X0, S_X1, S_AO, S_P0 = S_CNT, S_D, S_XOUT, S_XIN
V_DQ0, V_DQ1, V_D1 = 10, 11, 12
V_PTR = [[20, 21], [22, 23], [24, 25]]
V_BO = 26
V_XW = 27
P_ACC = 128
P_HACC = 192
P_XN = 32
NXR = 12
P_WF = 224
P_TMP = 248
LOG2E = math.log2(math.e)
QSCALE = LOG2E / math.sqrt(128.0)
LDS_XCH = LDS_V + 32768


def prologue(a, g, name):
    o = g.o
    D = o.get("pD", 6)
    L = o.get("lag", 0)
    if o.get("pstamp") == 2:
        a.e("s_memtime s[76:77]")
    a.e(f"s_lshl_b32 s{S_T0}, s{S_HEAD}, 7")
    srd_from(a, S_B1, 66, 0, S_T0, 128)
    a.e(f"s_cmp_lt_u32 s{S_HEAD}, 27")
    a.e(f"s_cselect_b32 s{S_B1+2}, 128, 0")
    srd_from(a, S_W1, 64, 0, None, 640 * 3456)
    srd_from(a, S_WQ, 60, 0, None, 640 * 8192)
    srd_from(a, S_XNS, S_WS, WS_XN, None, 2048 * 1280)
    srd_from(a, S_ACT, S_WS, WS_ACT, None, 128 * 54 * 1024)
    a.e(f"s_cmp_eq_u32 s{S_G}, 0")
    a.e(f"s_cselect_b32 s{S_T1}, s{S_QB}, s{S_PAIR}")
    a.e(f"s_lshl_b32 s{S_T1}, s{S_T1}, 2")
    a.e(f"s_add_u32 s{S_T1}, s{S_T1}, s{S_W}")
    a.e(f"s_mul_i32 s{S_X0}, s{S_T1}, 40960")
    a.e(f"s_add_u32 s{S_X1}, s{S_X0}, 20480")
    a.e(f"s_mul_i32 s{S_AO}, s{S_T1}, {2*54*1024}")
    a.e(f"s_lshl_b32 s{S_T1}, s{S_HEAD}, 11")
    a.e(f"s_add_u32 s{S_AO}, s{S_AO}, s{S_T1}")
    a.e(f"s_lshl_b32 s{S_QSRC}, s{S_G}, 18")
    a.e(f"s_lshl_b32 s{S_T1}, s{S_HEAD}, 8")
    a.e(f"s_add_u32 s{S_QSRC}, s{S_QSRC}, s{S_T1}")
    a.e(f"s_bfe_u32 s{S_T1}, s{S_WV}, 0x10001")
    a.e(f"s_lshl_b32 s{S_T1}, s{S_T1}, 7")
    a.e(f"s_add_u32 s{S_QSRC}, s{S_QSRC}, s{S_T1}")
    a.e(f"s_and_b32 s{S_T1}, s{S_WV}, 1")
    a.e(f"s_lshl_b32 s{S_T1}, s{S_T1}, 15")
    a.e(f"s_add_u32 s{S_QSRC}, s{S_QSRC}, s{S_T1}")
    a.e(f"s_mul_i32 s{S_1DST}, s{S_G}, 12288")
    a.e(f"s_lshl_b32 s{S_T1}, s{S_W}, 11")
    a.e(f"s_add_u32 s{S_QDST}, s{S_1DST}, s{S_T1}")
    a.e(f"s_lshl_b32 s{S_T1}, s{S_W}, 10")
    a.e(f"s_add_u32 s{S_1DST}, s{S_1DST}, s{S_T1}")
    a.e(f"s_add_u32 s{S_1DST}, s{S_1DST}, 8192")
    a.e(f"s_lshl_b32 s{S_1SRC}, s{S_G}, 5")
    a.e(f"s_and_b32 s{S_T1}, s{S_W}, 1")
    a.e(f"s_lshl_b32 s{S_T1}, s{S_T1}, 4")
    a.e(f"s_add_u32 s{S_1SRC}, s{S_1SRC}, s{S_T1}")
    a.e(f"s_lshr_b32 s{S_T1}, s{S_W}, 1")
    a.e(f"s_lshl_b32 s{S_T1}, s{S_T1}, 2")
    a.e(f"s_add_u32 s{S_1SRC}, s{S_1SRC}, s{S_T1}")
    a.e(f"s_mul_i32 s{S_1SRC}, s{S_1SRC}, 3456")
    a.e(f"s_add_u32 s{S_1SRC}, s{S_1SRC}, s{S_T0}")
    LN = V_T1
    A, B, C = V_T0, V_T2, V_T3
    a.e(f"v_bfe_u32 v{A}, v{LN}, 4, 1")
    a.e(f"v_bfe_u32 v{B}, v{LN}, 1, 1")
    a.e(f"v_xor_b32 v{B}, v{B}, v{A}")
    a.e(f"v_and_b32 v{C}, 1, v{LN}")
    a.e(f"v_lshl_add_u32 v{B}, v{B}, 1, v{C}")
    a.e(f"v_lshrrev_b32 v{C}, 5, v{LN}")
    a.e(f"v_lshl_add_u32 v{B}, v{C}, 2, v{B}")
    a.e(f"v_lshlrev_b32 v{B}, 4, v{B}")
    a.e(f"v_bfe_u32 v{C}, v{LN}, 2, 2")
    a.e(f"v_lshl_add_u32 v{C}, v{A}, 3, v{C}")
    a.e(f"v_lshl_add_u32 v{V_DQ0}, v{C}, 13, v{B}")
    a.e(f"v_add_u32 v{V_DQ1}, {16*8192 - 1024}, v{V_DQ0}")
    a.e(f"v_mul_u32_u24 v{V_D1}, 3456, v{C}")
    a.e(f"v_add_u32 v{V_D1}, v{V_D1}, v{B}")
    a.e(f"v_lshrrev_b32 v{V_BO}, 4, v{LN}")
    a.e(f"v_lshlrev_b32 v{V_BO}, 3, v{V_BO}")

    def pst(k):
        a.e(f"s_memtime s[{76+2*k}:{77+2*k}]")
        a.e("s_waitcnt lgkmcnt(0)")

    def late_setup():
        a.e(f"v_lshrrev_b32 v{A}, 5, v{LN}")
        a.e(f"v_bfe_u32 v{B}, v{LN}, 2, 3")
        a.e(f"v_lshlrev_b32 v{B}, 6, v{B}")
        a.e(f"v_lshl_add_u32 v{A}, v{A}, 10, v{B}")
        a.e(f"v_bfe_u32 v{B}, v{LN}, 4, 1")
        a.e(f"v_lshl_add_u32 v{A}, v{B}, 5, v{A}")
        a.e(f"v_and_b32 v{B}, 3, v{LN}")
        a.e(f"v_lshl_add_u32 v{V_PTR[0][0]}, v{B}, 3, v{A}")
        a.e(f"v_xor_b32 v{V_PTR[0][1]}, 32, v{V_PTR[0][0]}")
        for w in (1, 2):
            for e in range(2):
                a.e(f"v_add_u32 v{V_PTR[w][e]}, {49152*w}, v{V_PTR[0][e]}")
        a.e(f"s_mul_i32 s{S_T1}, s{S_G}, {LDS_PARK - LDS_XCH}")
        a.e(f"s_lshl_b32 s{S_P0}, s{S_W}, 13")
        a.e(f"s_add_u32 s{S_P0}, s{S_P0}, {LDS_XCH}")
        a.e(f"s_add_u32 s{S_T1}, s{S_T1}, s{S_P0}")
        a.e(f"v_add_u32 v{V_XW}, s{S_T1}, v{V_L16}")

    def body(has1):
        lag = L if has1 else 0
        nst = 10 + lag // 2
        def slot(j):
            idx = (j + 60 - (nst - 3)) % 6
            return 81920 + idx * 24576 if idx < 3 else (idx - 3) * 24576
        seq = []
        for tau in range(2 * nst):
            j = tau >> 1
            if has1 and tau < 20:
                for n in range(4):
                    seq.append((j, "H", tau, n, slot(j) + (tau & 1) * 12288 + 8192 + (n >> 1) * 512))
            if tau >= lag:
                for n in range(8):
                    seq.append((j, "Q", tau - lag, n, slot(j) + (tau & 1) * 12288 + (n >> 2) * 4096 + ((n >> 1) & 1) * 512))
        N = len(seq)
        stage_first = {}; xfirst = {}; xlast = {}
        for i, s in enumerate(seq):
            stage_first.setdefault(s[0], i); xfirst.setdefault(s[2], i); xlast[s[2]] = i
        lastH = max([i for i, s in enumerate(seq) if s[1] == "H"], default=-1)
        vq = OpQ(); lq = OpQ()
        cur = []; pend = []
        def dma_st(j):
            ops = []
            if has1 and j < 10:
                ops.append(([f"s_add_u32 m0, s{S_1DST}, {slot(j)}",
                             f"s_add_u32 s{S_T0}, s{S_1SRC}, {j*64*3456}",
                             f"buffer_load_dwordx4 v{V_D1}, {sr(S_W1,4)}, s{S_T0} offen lds"], ("W", j)))
            jq = j - lag // 2
            if jq >= 0:
                ops.append(([f"s_add_u32 m0, s{S_QDST}, {slot(j)}",
                             f"s_add_u32 s{S_T0}, s{S_QSRC}, {jq*64*8192}",
                             f"buffer_load_dwordx4 v{V_DQ0}, {sr(S_WQ,4)}, s{S_T0} offen lds"], ("W", j)))
                ops.append(([f"buffer_load_dwordx4 v{V_DQ1}, {sr(S_WQ,4)}, s{S_T0} offen offset:1024 lds"], ("W", j)))
            return ops
        def xn_ld(ks):
            ops = []
            for t in range(2):
                op = [f"buffer_load_dwordx4 {vr(P_XN+(ks%NXR)*8+4*t,4)}, v{V_L16}, {sr(S_XNS,4)}, s{S_X1 if t else S_X0} offen offset:{(ks&3)*1024}"]
                if ks & 3 == 3:
                    op.append(f"s_add_u32 s{S_X1 if t else S_X0}, s{S_X1 if t else S_X0}, 4096")
                ops.append((op, ("X", ks)))
            return ops
        def emit_one(i):
            if not cur:
                elig = [p for p in pend if p[1] <= i]
                if not elig:
                    return False
                p = min(elig, key=lambda x: x[0])
                pend.remove(p)
                cur.extend(p[2])
            op, tag = cur.pop(0)
            for s in op:
                a.e(s)
            vq.issue(tag)
            return True
        def vwait(tag, i):
            while any(t == tag for _, t in cur) or any(t == tag for p in pend for _, t in p[2]):
                assert emit_one(i), tag
            w = vq.need(tag)
            if w is not None:
                a.e(f"s_waitcnt vmcnt({w})")
        def lwait(tag):
            w = lq.need(tag)
            if w is not None:
                a.e(f"s_waitcnt lgkmcnt({min(w,15)})")
        def rd(i):
            j, kind, ks, n, off = seq[i]
            f = P_WF + 4 * (i % D)
            win = min(2, off // 49152)
            for h in range(2):
                a.e(f"ds_read_b64_tr_b16 {vr(f+2*h,2)}, v{V_PTR[win][n&1]} offset:{off + h*2048 - win*49152}")
                lq.issue(i)
        for grp in (dma_st(0), xn_ld(0), xn_ld(1)):
            cur.extend(grp)
            while cur:
                emit_one(0)
        if has1:
            for n in range(4):
                a.e(f"buffer_load_dwordx2 {vr(P_TMP+2*n,2)}, v{V_BO}, {sr(S_B1,4)}, 0 offen offset:{n*32}")
                vq.issue("B")
        if o.get("pstamp") == 2:
            a.e("s_memtime s[78:79]")
        late_setup()
        for j in range(1, 4):
            pend.append((stage_first[j], 0, dma_st(j)))
        for ks in range(2, 20):
            el = 0 if ks < NXR else xlast[ks - NXR] + 1
            el = max(el, xfirst[ks] - o.get("xla", 72))
            pend.append((xfirst[ks], el, xn_ld(ks)))
        for _ in range(o.get("pre_extra", 8)):
            emit_one(0)
        if o.get("pstamp") == 2:
            a.e("s_memtime s[80:81]")
        if has1:
            vwait("B", 0)
            if o.get("pstamp") == 2:
                a.e("s_memtime s[82:83]")
            for n in range(4):
                for r in range(4):
                    src = P_TMP + 2 * n + (r >> 1)
                    d = P_HACC + n * 4 + r
                    a.e(f"v_and_b32 v{d}, 0xffff0000, v{src}" if r & 1 else f"v_lshlrev_b32 v{d}, 16, v{src}")
        mish = []
        if has1:
            T = P_TMP
            for t in range(2):
                for cc in range(2):
                    els = [P_HACC + (t * 4 + 2 * cc) * 4 + k for k in range(8)]
                    for k0 in (0, 4):
                        e4 = els[k0:k0 + 4]
                        mish += [f"v_mul_f32 v{T+k}, {LOG2E!r}, v{h}" for k, h in enumerate(e4)]
                        mish += [f"v_exp_f32 v{T+k}, v{T+k}" for k in range(4)]
                        mish += [f"v_add_f32 v{T+k}, 1.0, v{T+k}" for k in range(4)]
                        mish += [f"v_fma_f32 v{T+k}, v{T+k}, v{T+k}, 1.0" for k in range(4)]
                        mish += [f"v_rcp_f32 v{T+k}, v{T+k}" for k in range(4)]
                        mish += [f"v_fma_f32 v{T+k}, v{T+k}, -2.0, 1.0" for k in range(4)]
                        mish += [f"v_mul_f32 v{h}, v{h}, v{T+k}" for k, h in enumerate(e4)]
                    dst = els[0]
                    mish += [f"v_cvt_pk_bf16_f32 v{dst+k}, v{els[2*k]}, v{els[2*k+1]}" for k in range(4)]
                    mish += [f"s_add_u32 s{S_T1}, s{S_AO}, {t*54*1024}",
                             f"buffer_store_dwordx4 {vr(dst,4)}, v{V_L16}, {sr(S_ACT,4)}, s{S_T1} offen offset:{cc*1024}"]
        nm_left = 2 * (N - 1 - lastH - 3)
        rate = (len(mish) + nm_left - 1) // nm_left if (mish and nm_left > 0) else 0
        rate = min(rate, o.get("mishrate", 3))
        nrd = 0
        kv = [g.dma_k(), g.dma_k(), g.dma_v(), g.dma_k(), g.dma_v()]
        for i, (j, kind, ks, n, off) in enumerate(seq):
            while nrd < min(N, i + D):
                j2 = seq[nrd][0]
                if nrd == stage_first[j2]:
                    vwait(("W", j2), i)
                    a.e("s_barrier")
                    if o.get("pstamp") == 2 and j2 < 3:
                        pst(4 + j2); lq.drain()
                    if o.get("pstamp") == 1 and j2 in (0, 1, 2, 4, 6, 8, 10):
                        pst((0, 1, 2, 4, 6, 8, 10).index(j2)); lq.drain()
                    if j2 + 4 < nst:
                        pend.append((stage_first[j2 + 4], 0, dma_st(j2 + 4)))
                    if j2 == nst - 2:
                        for k, grp in enumerate(kv):
                            pend.append((N + k, 0, [(gg, "KV") for gg in grp]))
                rd(nrd); nrd += 1
            if i == xfirst[ks]:
                vwait(("X", ks), i)
            lwait(i)
            f = P_WF + 4 * (i % D)
            for t in range(2):
                x = P_XN + (ks % NXR) * 8 + 4 * t
                if kind == "H":
                    d = P_HACC + (t * 4 + n) * 4
                    c = d if ks > 0 else P_HACC + n * 4
                    if ks == 0:
                        tt = 1 - t
                        d = P_HACC + (tt * 4 + n) * 4
                        x = P_XN + 4 * tt
                else:
                    d = P_ACC + (t * 8 + n) * 4
                    c = d if ks > 0 else "0"
                a.e(MF(d, f, x, c))
                if i > lastH + 2:
                    for _ in range(rate):
                        if mish:
                            s_ = mish.pop(0)
                            a.e(s_)
                            if s_.startswith("buffer_store"):
                                vq.issue("O")
            emit_one(i)
        while emit_one(N):
            pass
        if o.get("pstamp"):
            pst(7)
        a.e("s_nop 7")
        for s_ in mish:
            a.e(s_)
        a.e("s_barrier")
        if o.get("pstamp"):
            pst(8)
        for t in range(2):
            for s in range(4):
                src = P_ACC + (t * 8 + 2 * s) * 4
                for k in range(8):
                    a.e(f"v_mul_f32 v{src+k}, {QSCALE!r}, v{src+k}")
                for k in range(4):
                    a.e(f"v_cvt_pk_bf16_f32 v{src+k}, v{src+2*k}, v{src+2*k+1}")
                a.e(f"ds_write_b128 v{V_XW}, {vr(src,4)} offset:{(t*4+s)*1024}")

    l27 = name + "_no1"; ljoin = name + "_pj"
    a.e(f"s_cmp_ge_u32 s{S_HEAD}, 27")
    a.e(f"s_cbranch_scc1 {l27}")
    body(True)
    a.e(f"s_branch {ljoin}")
    a.label(l27)
    body(False)
    a.label(ljoin)
    a.e(f"v_add_u32 v{V_T0}, s{S_P0}, v{V_L16}")
    a.e("s_waitcnt vmcnt(8) lgkmcnt(0)")
    a.e("s_barrier")
    if o.get("pstamp"):
        pst(9)
    for s in range(8):
        a.e(f"ds_read_b128 {vr(V_Q+4*s,4)}, v{V_T0} offset:{s*1024}")
```

```python
import sys
from asmlib import *
import gen_kv, gen_attn16
HDR = open("recurrent_scan__compressed_kv_cla__dense_activation_mish__prompt.s.ref").read().split("; Override")[0]
def build(path, stamp=False, kvo=None, ato=None, outo=None, which=(1, 1, 1)):
    a = Asm()
    a.raw(HDR.rstrip())
    if which[0]:
        a.raw(f"; @launch kernel=kv_kernel grid=(256,1,1) block=({gen_kv.KV_THREADS},1,1) lds={gen_kv.KV_LDS}")
    if which[1]:
        a.raw(f"; @launch kernel=attn_kernel grid=(256,1,1) block=(512,1,1) lds={gen_attn16.LDS_TOTAL}")
    if which[2]:
        import gen_out
        a.raw(f"; @launch kernel=out_kernel grid=({gen_out.OUT_GRID},1,1) block=({gen_out.OUT_THREADS},1,1) lds={gen_out.OUT_LDS}")
    a.raw('.amdgcn_target "amdgcn-amd-amdhsa--gfx950"')
    if which[0]:
        gen_kv.gen_kv_kernel(a, opts=dict(stamp=stamp, **(kvo or {})))
    if which[1]:
        gen_attn16.gen_attn_kernel(a, D=4, opts=dict(stamp=stamp, prologue=True, **(ato or {})))
    if which[2]:
        gen_out.gen_out_kernel(a, opts=dict(stamp=stamp, **(outo or {})))
    open(path, "w").write(a.text())
if __name__ == "__main__":
    if len(sys.argv) > 1 and sys.argv[1] == "final":
        build("recurrent_scan__compressed_kv_cla__dense_activation_mish__prompt.s", stamp=False, ato=dict(dspread=(1, 5, 9)), outo=dict(P=3, xb=1))
        build("v_norot.s", stamp=False, kvo=dict(rot=False), ato=dict(dspread=(1, 5, 9)), outo=dict(P=3, xb=1))
    else:
        build("p123.s", stamp=True)
        build("pv_a.s", stamp=True, outo=dict(P=3, xb=1, rot=16))
        build("pv_b.s", stamp=True, outo=dict(P=3, xb=1, rot=32))
        build("pv_c.s", stamp=True, outo=dict(P=2, xb=1, rot=16))
```

```python
import math
from asmlib import *
from layout import *
from common import MF, srd_from

LDS_K = 0
LDS_V = 49152
LDS_X = 114688
LDS_TOTAL = 163840
BIAS = 16.0

S_KSRD, S_VSRD, S_CSRD, S_QSRD = 4, 8, 12, 16
S_HEAD, S_PAIR, S_WV, S_W, S_G = 20, 21, 22, 23, 24
S_KCUR, S_VCUR, S_KWRAP, S_VWRAP = 25, 26, 27, 28
S_KDST, S_VDST, S_KRD, S_VRD = 29, 30, 31, 32
S_CNT, S_D, S_QB, S_PASS = 33, 34, 35, 36
S_MSK, S_T0, S_T1, S_T2 = 37, 38, 39, 40
S_KDSTEND, S_XOUT, S_XIN, S_CSOFF = 41, 42, 43, 44
S_T3 = 45
S_M = [46, 48, 50, 52]
S_WS = 54
S_KDST0, S_VDST0 = 56, 57

V_L16, V_KA, V_VA0, V_VA1, V_KB, V_VB0, V_VB1, V_MB, V_NINF = 1, 2, 3, 4, 5, 6, 7, 8, 9
V_M = [10, 11]
V_ONE = 12
V_T0, V_T1, V_T2, V_T3 = 16, 17, 18, 19
V_E = 20
V_CK = 28
V_XO, V_XI = 29, 30
V_FR = 32
V_XB = 48
V_O = 64
V_Q = 128
V_C = 160
V_LA = 168
V_S = [176, 192]
V_P = [208, 216]
V_QB = 224
D = 4


class LdsQ:
    def __init__(self):
        self.q = []
    def issue(self, tag):
        self.q.append(tag)
    def need(self, tag):
        if tag not in self.q:
            return None
        i = self.q.index(tag)
        n = len(self.q) - 1 - i
        self.q = self.q[i + 1:]
        return n
    def drain(self):
        self.q = []


class AttnGen:
    def __init__(self, a, opts=None):
        self.a = a
        self.q = LdsQ()
        self.ool = []
        self.defer = []
        self.o = dict(dspread=(1, 5, 9), st="")
        if opts:
            self.o.update(opts)

    def frag(self, slot):
        return V_FR + 4 * (slot % D)

    def read_frag(self, kind, idx, slot, first):
        a = self.a
        if first:
            if kind == "K":
                a.e(f"s_add_u32 s{S_KRD}, s{S_KRD}, 16384")
                a.e(f"s_cmp_eq_u32 s{S_KRD}, 49152")
                a.e(f"s_cselect_b32 s{S_KRD}, 0, s{S_KRD}")
                a.e(f"v_add_u32 v{V_KA}, s{S_KRD}, v{V_KB}")
            else:
                a.e(f"s_add_u32 s{S_VRD}, s{S_VRD}, 16384")
                a.e(f"s_and_b32 s{S_VRD}, s{S_VRD}, 0xffff")
                a.e(f"v_add_u32 v{V_VA0}, s{S_VRD}, v{V_VB0}")
                a.e(f"v_add_u32 v{V_VA1}, s{S_VRD}, v{V_VB1}")
        base = V_KA if kind == "K" else (V_VA0 if idx < 4 else V_VA1)
        a.e(f"ds_read_b128 {vr(self.frag(slot),4)}, v{base} offset:{idx*1024}")
        self.q.issue((kind, idx))

    def dma_k(self):
        g0 = [f"s_mov_b32 m0, s{S_KDST}",
              f"s_add_u32 s{S_KDST}, s{S_KDST}, 16384",
              f"buffer_load_dwordx4 v{V_L16}, {sr(S_KSRD,4)}, s{S_KCUR} offen lds"]
        g1 = [f"buffer_load_dwordx4 v{V_L16}, {sr(S_KSRD,4)}, s{S_KCUR} offen offset:1024 lds",
              f"s_cmp_eq_u32 s{S_KDST}, s{S_KDSTEND}",
              f"s_cselect_b32 s{S_KDST}, s{S_KDST0}, s{S_KDST}",
              f"s_add_u32 s{S_KCUR}, s{S_KCUR}, 16384",
              f"s_cmp_eq_u32 s{S_KCUR}, s{S_KWRAP}",
              f"s_cselect_b32 s{S_KCUR}, s{S_T2}, s{S_KCUR}"]
        return [g0, g1]

    def dma_v(self):
        g0 = [f"s_add_u32 m0, s{S_VDST}, s{S_VDST0}",
              f"s_add_u32 s{S_VDST}, s{S_VDST}, 16384",
              f"buffer_load_dwordx4 v{V_L16}, {sr(S_VSRD,4)}, s{S_VCUR} offen lds"]
        g1 = [f"buffer_load_dwordx4 v{V_L16}, {sr(S_VSRD,4)}, s{S_VCUR} offen offset:1024 lds",
              f"s_and_b32 s{S_VDST}, s{S_VDST}, 0xffff",
              f"s_add_u32 s{S_VCUR}, s{S_VCUR}, 16384",
              f"s_cmp_eq_u32 s{S_VCUR}, s{S_VWRAP}",
              f"s_cselect_b32 s{S_VCUR}, s{S_T2}, s{S_VCUR}"]
        return [g0, g1]

    def sreg(self, par, u, e):
        return V_S[par] + ((e >> 2) * 2 + u) * 4 + (e & 3)

    def sm_ops(self, par):
        P = V_P[par]
        t = lambda i: V_E + (i % 8)
        exps = []; plains = []
        for i in range(16):
            u, e = i >> 3, i & 7
            exps.append(f"v_exp_f32 v{t(i)}, v{self.sreg(par,u,e)}")
            if i & 1:
                plains.append((i, f"v_cvt_pk_bf16_f32 v{P+(i>>1)}, v{t(i-1)}, v{t(i)}"))
                if i == 5:
                    plains.append((i, f"v_or3_b32 v{V_CK}, v{P}, v{P+1}, v{P+2}"))
                if i in (9, 13):
                    plains.append((i, f"v_or3_b32 v{V_CK}, v{V_CK}, v{P+(i>>1)-1}, v{P+(i>>1)}"))
        plains.append((15, f"v_or_b32 v{V_CK}, v{V_CK}, v{P+7}"))
        plains.append((15, f"v_and_b32 v{V_CK}, s{S_MSK}, v{V_CK}"))
        return exps, plains

    def sm_linear(self, par, check=True):
        exps, plains = self.sm_ops(par)
        if not check:
            plains = [p for p in plains if "cvt" in p[1]]
        out = []; k = 0
        for i, e in enumerate(exps):
            out.append(e)
            while k < len(plains) and plains[k][0] <= i - 1:
                out.append(plains[k][1]); k += 1
        out.append("s_nop 0")
        while k < len(plains):
            out.append(plains[k][1]); k += 1
        return out

    def mask_block(self, par):
        a = self.a
        a.e(f"v_add_u32 v{V_T0}, s{S_D}, v{V_MB}")
        for r in range(16 + 3):
            if r < 16:
                aa, u, rr = r >> 3, (r >> 2) & 1, r & 3
                a.e(f"v_cmp_le_i32 {sr(S_M[r%4],2)}, {16 * (aa - u) + rr}, v{V_T0}")
            else:
                a.e("s_nop 0")
            if r >= 3:
                x = V_S[par] + r - 3
                a.e(f"v_cndmask_b32 v{x}, v{V_NINF}, v{x}, {sr(S_M[(r-3)%4],2)}")

    def rare_block(self, par, has_next, first):
        a = self.a
        a.e("s_nop 7")
        d = [V_T0, V_T1]; f = [V_T2, V_T3]
        for k in range(4):
            for u in range(2):
                s = lambda e: self.sreg(par, u, e)
                if k == 0:
                    a.e(f"v_max3_f32 v{d[u]}, v{s(0)}, v{s(1)}, v{s(2)}")
                elif k < 3:
                    a.e(f"v_max3_f32 v{d[u]}, v{d[u]}, v{s(2*k+1)}, v{s(2*k+2)}")
                else:
                    a.e(f"v_max_f32 v{d[u]}, v{d[u]}, v{s(7)}")
        for sw in ("v_permlane16_swap_b32", "v_permlane32_swap_b32"):
            for r, t in zip(d, f):
                a.e(f"v_mov_b32 v{t}, v{r}")
            a.e("s_nop 1")
            for r, t in zip(d, f):
                a.e(f"{sw} v{r}, v{t}")
            a.e("s_nop 1")
            for r, t in zip(d, f):
                a.e(f"v_max_f32 v{r}, v{r}, v{t}")
        for u in range(2):
            a.e(f"v_add_f32 v{d[u]}, {BIAS!r}, v{d[u]}")
        for u in range(2):
            if first:
                a.e(f"v_max_f32 v{d[u]}, 0xf1800000, v{d[u]}")
                a.e(f"v_mov_b32 v{V_M[u]}, v{d[u]}")
            else:
                a.e(f"v_max_f32 v{d[u]}, 0, v{d[u]}")
                a.e(f"v_add_f32 v{V_M[u]}, v{V_M[u]}, v{d[u]}")
                a.e(f"v_exp_f32 v{f[u]}, -v{d[u]}")
        for u in range(2):
            for e in range(8):
                x = self.sreg(par, u, e)
                a.e(f"v_sub_f32 v{x}, v{x}, v{d[u]}")
        for u in range(2):
            for i in range(4):
                a.e(f"v_sub_f32 v{V_C+4*u+i}, 0, v{V_M[u]}")
            if has_next:
                for e in range(8):
                    x = self.sreg(par ^ 1, u, e)
                    a.e(f"v_sub_f32 v{x}, v{x}, v{d[u]}")
        if not first:
            for u in range(2):
                for i in range(4):
                    a.e(f"v_mul_f32 v{V_LA+4*u+i}, v{V_LA+4*u+i}, v{f[u]}")
            for i in range(64):
                a.e(f"v_mul_f32 v{V_O+i}, v{V_O+i}, v{f[(i >> 2) & 1]}")
            for s in self.sm_linear(par, False):
                a.e(s)
        a.e("s_nop 1")

    def iteration(self, qk, sm, pv, par, nxt, dk, dv, vm, first=False, lgkm_before_bar=False, name="", extra=None,
                  vorder=None, barslot=None, hooks=None, qreg=V_Q, vfirst=False):
        a = self.a; o = self.o
        a.c(f"==== iteration {name}")
        slots = []
        if qk:
            slots += [("K", s) for s in range(8)]
        if pv:
            slots += [("V", i) for i in (vorder or range(8))]
        n = len(slots)
        allslots = slots + list(nxt or [])
        firsts = {i for i in range(len(allslots)) if i == 0 or i == n or allslots[i][0] != allslots[i-1][0]}
        for i in range(min(D, n)):
            if slots[i] not in self.q.q or self._stale:
                self.read_frag(slots[i][0], slots[i][1], i, i in firsts)
        self._stale = False
        if sm:
            lm = a.newlabel("L_mask"); lb = a.newlabel("L_maskback")
            a.e(f"s_cmp_lt_i32 s{S_D}, 32")
            a.e(f"s_cbranch_scc1 {lm}")
            a.label(lb)
            def blk(lm=lm, lb=lb, par=par):
                a.label(lm)
                self.mask_block(par)
                a.e(f"s_branch {lb}")
            self.ool.append(blk)
        Sd = V_S[par ^ 1] if not first else V_S[0]
        mf = []
        for i, (kind, idx) in enumerate(slots):
            f = self.frag(i)
            if kind == "V" and (i == 0 or slots[i-1][0] == "K") and not o.get("noones"):
                for u in range(2):
                    mf.append((None, MF(V_LA + 4 * u, V_ONE, V_P[par ^ 1] + 4 * u, V_LA + 4 * u)))
            for u in range(2):
                if kind == "K":
                    aa, s = idx >> 2, idx & 3
                    d = Sd + (aa * 2 + u) * 4
                    c = d if s > 0 else ("0" if first else V_C + 4 * u)
                    mf.append(((i, u), MF(d, f, qreg + (u * 4 + s) * 4, c)))
                else:
                    d = V_O + (idx * 2 + u) * 4
                    mf.append(((i, u), MF(d, f, V_P[par ^ 1] + 4 * u, d)))
        ng = len(mf)
        gaps = [[] for _ in range(ng)]
        if sm:
            exps, plains = self.sm_ops(par)
            if n == 16:
                egap = [2 * k for k in range(16)]
                for i, e in enumerate(exps):
                    gaps[egap[i]].append(e)
                k = 0
                for g in range(1, ng):
                    if gaps[g]:
                        continue
                    cnt = 0
                    while k < len(plains) and cnt < 2 and egap[plains[k][0]] < g:
                        gaps[g].append(plains[k][1]); k += 1; cnt += 1
                while k < len(plains):
                    gaps[ng - 1].append(plains[k][1]); k += 1
            else:
                seq = self.sm_linear(par)
                for k, s in enumerate(seq):
                    gaps[min(ng - 1, k * ng // len(seq))].append(s)
        if extra:
            for k, s in enumerate(extra):
                gaps[min(ng - 1, k * ng // len(extra))].append(s)
        dmas = []
        if dk: dmas += self.dma_k()
        if dv: dmas += self.dma_v()
        if o.get("nodma") and name in ("odd", "even", "it0"):
            dmas = [[x for x in g_ if not x.startswith("buffer")] for g_ in dmas]
        if o.get("novalu") and name in ("odd", "even"):
            gaps = [[x for x in g_ if o["novalu"] == 2 and "exp" not in x] for g_ in gaps]
        if vfirst:
            dmas = dmas[2:] + dmas[:2]
        if barslot is None:
            barslot = n - D
        pos = list(o["dspread"]) if n == 16 else [0, 1, 2, 3]
        dpos = {}
        for k, grp in enumerate(self.defer):
            dpos.setdefault(pos[k], []).append(grp)
        self.defer = dmas[1:]
        dmas = dmas[:1]
        for g, (su, text) in enumerate(mf):
            if su is not None and su[1] == 0:
                i = su[0]
                if i == barslot and vm is not None:
                    if lgkm_before_bar:
                        a.e("s_waitcnt lgkmcnt(0)")
                        self.q.drain()
                    if vm >= 0:
                        a.e(f"s_waitcnt vmcnt({vm})")
                    if not (o.get("nobar") and name in ("odd", "even")):
                        a.e("s_barrier")
                w = self.q.need(slots[i])
                if w is not None:
                    a.e(f"s_waitcnt lgkmcnt({w})")
            a.e(text)
            if su is not None and su[1] == 1:
                i = su[0]
                if i + D < len(allslots):
                    k2, i2 = allslots[i + D]
                    self.read_frag(k2, i2, i + D, (i + D) in firsts)
                if i == barslot and dmas:
                    for s_ in dmas.pop(0):
                        a.e(s_)
                for grp in dpos.get(i, []):
                    for s_ in grp:
                        a.e(s_)
                if hooks and i in hooks:
                    hooks[i]()
            for s_ in gaps[g]:
                a.e(s_)
        if sm:
            lr = a.newlabel("L_rare"); lb = a.newlabel("L_rareback")
            a.e(f"v_cmp_ne_u32 vcc, 0, v{V_CK}")
            a.e(f"s_sub_u32 s{S_D}, s{S_D}, 64")
            a.e(f"s_cbranch_vccnz {lr}")
            a.label(lb)
            def blk(lr=lr, lb=lb, par=par, qk=qk):
                a.label(lr)
                self.rare_block(par, qk, False)
                a.e(f"s_branch {lb}")
            self.ool.append(blk)

    def stamp(self, k):
        a = self.a
        if not self.o.get("stamp") or self.o.get("pstamp"):
            return
        l1 = a.newlabel("L_st"); l2 = a.newlabel("L_st")
        a.e(f"s_cmp_eq_u32 s{S_PASS}, 0")
        a.e(f"s_cbranch_scc0 {l1}")
        a.e(f"s_memtime s[{76+2*k}:{77+2*k}]")
        a.e(f"s_branch {l2}")
        a.label(l1)
        a.e(f"s_memtime s[{86+2*k}:{87+2*k}]")
        a.label(l2)
        a.e("s_waitcnt lgkmcnt(0)")

    def qsetup(self):
        a = self.a
        a.e(f"s_lshl_b32 s{S_D}, s{S_QB}, 2")
        a.e(f"s_add_u32 s{S_D}, s{S_D}, s{S_W}")
        a.e(f"s_sub_u32 s{S_D}, s{S_D}, s{S_G}")
        a.e(f"s_lshl_b32 s{S_D}, s{S_D}, 5")
        a.e(f"s_mov_b32 s{S_CNT}, s{S_QB}")

    def combine_ops(self):
        ST = self.o["st"]
        X = lambda i: (V_XB + i) if i < 16 else (V_P[0] + i - 16)
        so = [V_E + 4, V_E + 5]; sp = [V_E + 6, V_E + 7]; tt = [V_T2, V_T3]
        h = []
        for u in range(2):
            h.append(f"v_max_f32 v{tt[u]}, v{V_M[u]}, v{V_E+u}")
        for u in range(2):
            h.append(f"v_sub_f32 v{so[u]}, v{V_M[u]}, v{tt[u]}")
            h.append(f"v_sub_f32 v{sp[u]}, v{V_E+u}, v{tt[u]}")
        for u in range(2):
            h.append(f"v_exp_f32 v{so[u]}, v{so[u]}")
            h.append(f"v_exp_f32 v{sp[u]}, v{sp[u]}")
        h.append("s_nop 0")
        for u in range(2):
            h.append(f"v_mul_f32 v{tt[u]}, v{V_LA+4*u}, v{so[u]}")
        for u in range(2):
            h.append(f"v_fmac_f32 v{tt[u]}, v{V_E+2+u}, v{sp[u]}")
        for u in range(2):
            h.append(f"v_rcp_f32 v{tt[u]}, v{tt[u]}")
        h.append("s_nop 0")
        for u in range(2):
            h.append(f"v_mul_f32 v{so[u]}, v{so[u]}, v{tt[u]}")
            h.append(f"v_mul_f32 v{sp[u]}, v{sp[u]}, v{tt[u]}")
        b = []
        for c in range(2):
            for u in range(2):
                regs = [((2 * c + hh) * 2 + u) * 4 + r for hh in range(2) for r in range(4)]
                b += [f"v_mul_f32 v{V_O+i}, v{V_O+i}, v{so[u]}" for i in regs]
                b += [f"v_fmac_f32 v{V_O+i}, v{X(i)}, v{sp[u]}" for i in regs]
                dst = V_O + 32 + (c * 2 + u) * 4
                b += [f"v_cvt_pk_bf16_f32 v{dst+k}, v{V_O+regs[2*k]}, v{V_O+regs[2*k+1]}" for k in range(4)]
                b.append(f"buffer_store_dwordx4 {vr(dst,4)}, v{V_L16}, {sr(S_CSRD,4)}, s{S_T0 if u == 0 else S_T1} offen offset:{c*1024}{ST}")
        return h, b

    def main(self, name):
        a = self.a
        KN = [("K", i) for i in range(D)]
        zero = [f"v_mov_b32 v{V_O+i}, 0" for i in range(64)] + [f"v_mov_b32 v{V_LA+i}, 0" for i in range(8)]
        lit0 = name + "_it0"
        self._stale = True
        self.stamp(0)
        qb_reads = [f"ds_read_b128 {vr(V_QB+4*s,4)}, v{V_XI} offset:{s*1024}" for s in range(8)]
        self.q.q = []
        self.iteration(True, False, False, 0, KN, True, False, 6, first=True, lgkm_before_bar=True, name="pre",
                       hooks={0: lambda: [(a.e(s_), self.q.issue("x")) for s_ in qb_reads]})
        st_pre = (list(self.q.q), list(self.defer))
        a.label(lit0)
        lm = a.newlabel("L_premask")
        a.e("s_nop 7")
        a.e(f"s_cmp_lt_i32 s{S_D}, 32")
        a.e(f"s_cbranch_scc0 {lm}")
        self.mask_block(0)
        a.label(lm)
        self.rare_block(0, False, True)
        self.iteration(True, True, False, 0, KN, True, True, 4, lgkm_before_bar=True, name="it0", extra=zero)
        state0 = (list(self.q.q), list(self.defer))
        self.stamp(1)
        lloop = a.newlabel("L_loop"); lend = a.newlabel("L_loopend")
        a.e(f"s_cmp_eq_u32 s{S_CNT}, 0")
        a.e(f"s_cbranch_scc1 {lend}")
        a.raw(".p2align 3")
        a.label(lloop)
        self.iteration(True, True, True, 1, KN, True, True, 4, name="odd")
        self.iteration(True, True, True, 0, KN, True, True, 4, name="even")
        assert (self.q.q, self.defer) == state0
        a.e(f"s_sub_u32 s{S_CNT}, s{S_CNT}, 1")
        a.e(f"s_cmp_lg_u32 s{S_CNT}, 0")
        a.e(f"s_cbranch_scc1 {lloop}")
        a.label(lend)
        self.stamp(2)
        a.e(f"s_cmp_eq_u32 s{S_KRD}, 0")
        a.e(f"s_cselect_b32 s{S_KRD}, 49152, s{S_KRD}")
        a.e(f"s_sub_u32 s{S_KRD}, s{S_KRD}, 16384")
        self.q.q = [("stale", i) for i in range(len(self.q.q))]
        VO = [4, 5, 6, 7, 0, 1, 2, 3]
        qmov = [f"v_mov_b32 v{V_Q+i}, v{V_QB+i}" for i in range(32)]
        self.iteration(False, True, True, 1, [("V", i) for i in VO[:D]], False, False, 4, name="last")
        def xaddr():
            a.e(f"s_add_u32 s{S_T0}, s{S_VRD}, 32768")
            a.e(f"s_and_b32 s{S_T0}, s{S_T0}, 0xffff")
            a.e(f"s_add_u32 s{S_T0}, s{S_T0}, {LDS_V - 6*8192}")
            a.e(f"s_cmp_ge_u32 s{S_WV}, 6")
            a.e(f"s_cselect_b32 s{S_XOUT}, s{S_T0}, {LDS_X}")
            a.e(f"s_lshl_b32 s{S_T1}, s{S_WV}, 13")
            a.e(f"s_add_u32 s{S_XOUT}, s{S_XOUT}, s{S_T1}")
            a.e(f"s_xor_b32 s{S_T1}, s{S_WV}, 4")
            a.e(f"s_cmp_ge_u32 s{S_T1}, 6")
            a.e(f"s_cselect_b32 s{S_XIN}, s{S_T0}, {LDS_X}")
            a.e(f"s_lshl_b32 s{S_T1}, s{S_T1}, 13")
            a.e(f"s_add_u32 s{S_XIN}, s{S_XIN}, s{S_T1}")
            a.e(f"v_add_u32 v{V_XO}, s{S_XOUT}, v{V_L16}")
            a.e(f"v_add_u32 v{V_XI}, s{S_XIN}, v{V_L16}")
            a.e(f"s_add_u32 s{S_T0}, s{S_VRD}, 49152")
            a.e(f"s_and_b32 s{S_T0}, s{S_T0}, 0xffff")
            a.e(f"s_lshl_b32 s{S_T1}, s{S_WV}, 10")
            a.e(f"s_add_u32 s{S_T0}, s{S_T0}, s{S_T1}")
            a.e(f"s_add_u32 s{S_T0}, s{S_T0}, {LDS_V}")
            a.e(f"s_xor_b32 s{S_T1}, s{S_T0}, 4096")
            a.e(f"v_add_u32 v{V_T0}, s{S_T0}, v{V_L16}")
            a.e(f"v_add_u32 v{V_T1}, s{S_T1}, v{V_L16}")
            a.e(f"v_mov_b32 v{V_E}, v{V_M[0]}")
            a.e(f"v_mov_b32 v{V_E+1}, v{V_M[1]}")
        def wr(k):
            def f():
                for j in (2 * k, 2 * k + 1):
                    a.e(f"ds_write_b128 v{V_XO}, {vr(V_O+32+4*j,4)} offset:{j*1024}")
                    self.q.issue("w")
            return f
        def wr_ml():
            a.e(f"v_mov_b32 v{V_E+2}, v{V_LA}")
            a.e(f"v_mov_b32 v{V_E+3}, v{V_LA+4}")
            a.e(f"ds_write_b128 v{V_T0}, {vr(V_E,4)}")
            self.q.issue("w")
        hooks = {0: xaddr, 3: wr_ml, 4: wr(0), 5: wr(1), 6: wr(2), 7: wr(3)}
        self.iteration(False, False, True, 0, None, False, False, -1, name="post", vorder=VO, barslot=2, hooks=hooks, extra=qmov)
        self.stamp(3)
        a.e(f"s_lshl_b32 s{S_T0}, s{S_QB}, 20")
        a.e(f"s_add_u32 s{S_T0}, s{S_T0}, s{S_CSOFF}")
        a.e("s_waitcnt lgkmcnt(0)")
        a.e("s_barrier")
        self.q.drain()
        a.e(f"ds_read_b128 {vr(V_E,4)}, v{V_T1}")
        for i in range(8):
            r = V_XB + 4 * i if i < 4 else V_P[0] + 4 * (i - 4)
            a.e(f"ds_read_b128 {vr(r,4)}, v{V_XI} offset:{i*1024}")
        a.e(f"s_add_u32 s{S_T1}, s{S_T0}, 131072")
        lfin = name + "_fin"
        a.e(f"s_cmp_eq_u32 s{S_PASS}, 1")
        a.e(f"s_cbranch_scc1 {lfin}")
        a.e(f"s_mov_b32 s{S_PASS}, 1")
        a.e(f"s_mov_b32 s{S_QB}, s{S_PAIR}")
        a.e(f"s_mov_b32 s{S_KWRAP}, -1")
        a.e(f"s_mov_b32 s{S_VWRAP}, -1")
        self.qsetup()
        h, b = self.combine_ops()
        a.e("s_waitcnt lgkmcnt(8)")
        for s_ in h:
            a.e(s_)
        self.q.q = ["x"] * 8
        self._stale = True
        self.stamp(0)
        self.iteration(True, False, False, 0, KN, True, True, 6, first=True, lgkm_before_bar=True, name="pre2", extra=b, vfirst=True)
        for grp in self.defer[:2]:
            for s_ in grp:
                a.e(s_)
        self.defer = self.defer[2:]
        assert (list(self.q.q), list(self.defer)) == st_pre, (self.q.q, st_pre)
        a.e(f"s_branch {lit0}")
        a.label(lfin)
        h, b = self.combine_ops()
        a.e("s_waitcnt lgkmcnt(8)")
        for s_ in h:
            a.e(s_)
        a.e("s_waitcnt lgkmcnt(0)")
        for s_ in b:
            a.e(s_)
        self.stamp(4)


def gen_attn_kernel(a, name="attn_kernel", opts=None):
    from gen_pro2 import Prologue
    g = AttnGen(a, opts)
    o = g.o
    kernel_begin(a, name)
    lend = name + "_end"
    a.e("s_cmp_ge_u32 s2, 256")
    a.e(f"s_cbranch_scc1 {lend}")
    a.e(f"s_load_dwordx2 {sr(S_WS,2)}, s[0:1], 96")
    a.e("s_load_dwordx2 s[60:61], s[0:1], 16")
    a.e("s_load_dwordx4 s[64:67], s[0:1], 56")
    if o.get("stamp"):
        a.e("s_memtime s[96:97]")
        a.e("s_memrealtime s[98:99]")
    a.e(f"v_lshrrev_b32 v{V_T0}, 6, v0")
    a.e(f"v_and_b32 v{V_T1}, 63, v0")
    a.e(f"v_readfirstlane_b32 s{S_WV}, v{V_T0}")
    a.e(f"v_lshlrev_b32 v{V_L16}, 4, v{V_T1}")
    a.e(f"s_and_b32 s{S_T0}, s2, 7")
    a.e(f"s_lshl_b32 s{S_T0}, s{S_T0}, 2")
    a.e(f"s_lshr_b32 s{S_T1}, s2, 6")
    a.e(f"s_add_u32 s{S_HEAD}, s{S_T0}, s{S_T1}")
    a.e(f"s_bfe_u32 s{S_PAIR}, s2, 0x30003")
    a.e(f"s_sub_u32 s{S_QB}, 15, s{S_PAIR}")
    a.e(f"s_and_b32 s{S_W}, s{S_WV}, 3")
    a.e(f"s_lshr_b32 s{S_G}, s{S_WV}, 2")

    def attn_setup():
        a.e(f"s_lshl_b32 s{S_T0}, s{S_HEAD}, 19")
        srd_from(a, S_KSRD, S_WS, WS_KF, S_T0, 1 << 19)
        srd_from(a, S_VSRD, S_WS, WS_VF, S_T0, 1 << 19)
        srd_from(a, S_CSRD, S_WS, WS_CTX, None, 16 << 20)
        a.e(f"s_lshl_b32 s{S_T0}, s{S_G}, 13")
        a.e(f"v_add_u32 v{V_KB}, s{S_T0}, v{V_L16}")
        a.e(f"s_mul_i32 s{S_T1}, s{S_G}, 12288")
        a.e(f"s_add_u32 s{S_T1}, s{S_T1}, {LDS_V}")
        a.e(f"v_add_u32 v{V_VB0}, s{S_T1}, v{V_L16}")
        a.e(f"s_lshl_b32 s{S_T1}, s{S_G}, 12")
        a.e(f"s_add_u32 s{S_T1}, s{S_T1}, {LDS_V}")
        a.e(f"v_add_u32 v{V_VB1}, s{S_T1}, v{V_L16}")
        a.e(f"v_and_b32 v{V_T0}, 15, v{V_T1}")
        a.e(f"v_lshrrev_b32 v{V_T2}, 4, v{V_T1}")
        a.e(f"v_lshlrev_b32 v{V_T3}, 2, v{V_T2}")
        a.e(f"v_sub_u32 v{V_MB}, v{V_T0}, v{V_T3}")
        a.e(f"v_mov_b32 v{V_NINF}, 0xff800000")
        a.e(f"s_lshl_b32 s{S_CSOFF}, s{S_W}, 18")
        a.e(f"s_lshl_b32 s{S_T0}, s{S_HEAD}, 12")
        a.e(f"s_add_u32 s{S_CSOFF}, s{S_CSOFF}, s{S_T0}")
        a.e(f"s_lshl_b32 s{S_T0}, s{S_G}, 11")
        a.e(f"s_add_u32 s{S_CSOFF}, s{S_CSOFF}, s{S_T0}")
        a.e(f"s_mov_b32 s{S_MSK}, {o.get('msk', '0x40004000')}")
        a.e(f"s_lshl_b32 s{S_T2}, s{S_WV}, 11")
        a.e(f"s_mov_b32 s{S_KCUR}, s{S_T2}")
        a.e(f"s_mov_b32 s{S_VCUR}, s{S_T2}")
        a.e(f"s_lshl_b32 s{S_T0}, s{S_QB}, 15")
        a.e(f"s_add_u32 s{S_T0}, s{S_T0}, 32768")
        a.e(f"s_add_u32 s{S_KWRAP}, s{S_T0}, s{S_T2}")
        a.e(f"s_mov_b32 s{S_VWRAP}, s{S_KWRAP}")
        a.e(f"s_add_u32 s{S_KDST0}, s{S_T2}, {LDS_K}")
        a.e(f"s_mov_b32 s{S_KDST}, s{S_KDST0}")
        a.e(f"s_add_u32 s{S_KDSTEND}, s{S_KDST0}, 49152")
        a.e(f"s_add_u32 s{S_VDST0}, s{S_T2}, {LDS_V}")
        a.e(f"s_mov_b32 s{S_VDST}, 0")
        a.e(f"s_mov_b32 s{S_KRD}, 32768")
        a.e(f"s_mov_b32 s{S_VRD}, 49152")
        a.e(f"s_mov_b32 s{S_PASS}, 0")
    Prologue(a, g, name, attn_setup).emit()
    for i in range(4):
        a.e(f"v_mov_b32 v{V_ONE+i}, 0x3f803f80")
    g.qsetup()
    g.main(name)
    a.e(f"s_branch {lend}")
    for blk in g.ool:
        blk()
    a.label(lend)
    if o.get("stamp"):
        a.e("s_cmp_ge_u32 s2, 256")
        a.e(f"s_cbranch_scc1 {lend}2")
        a.e("s_memtime s[64:65]")
        a.e("s_memrealtime s[66:67]")
        a.e("s_waitcnt lgkmcnt(0)")
        a.e("s_sub_u32 s64, s64, s96")
        a.e("s_sub_u32 s66, s66, s98")
        a.e("v_mov_b32 v20, s64")
        a.e("v_mov_b32 v21, s66")
        a.e("v_mov_b32 v22, s98")
        a.e("v_mov_b32 v23, 0")
        srd_from(a, S_QSRD, S_WS, 101 * MB, None, 1 << 20)
        a.e(f"s_lshl_b32 s{S_T0}, s2, 3")
        a.e(f"s_add_u32 s{S_T0}, s{S_T0}, s{S_WV}")
        a.e(f"s_lshl_b32 s{S_T0}, s{S_T0}, 4")
        a.e("v_mov_b32 v24, 0")
        a.e(f"buffer_store_dwordx4 v[20:23], v24, {sr(S_QSRD,4)}, s{S_T0} offen")
        a.e(f"s_lshl_b32 s{S_T0}, s{S_T0}, 2")
        a.e(f"s_add_u32 s{S_T0}, s{S_T0}, 65536")
        for k in range(10):
            a.e(f"s_sub_u32 s{76+2*k}, s{76+2*k}, s96")
            a.e(f"v_mov_b32 v{32+k}, s{76+2*k}")
        for k in range(3):
            a.e(f"buffer_store_dwordx4 v[{32+4*k}:{35+4*k}], v24, {sr(S_QSRD,4)}, s{S_T0} offen offset:{16*k}")
        a.label(lend + "2")
    a.e("s_endpgm")
    kernel_desc(a, name, 256, 102)
```

```python
from common import *
from gen_kv_v4 import ln_list

NSLOT = 6
SLOT = 16384
LDS_ST = NSLOT * SLOT
LDS_X = 4 * SLOT
KV_LDS = LDS_ST + 65536
KV_THREADS = 512
import math
QSCALE = math.log2(math.e) / math.sqrt(128.0)

S_CKV, S_W, S_OUT, S_X, S_XN, S_SIDE, S_SOUT = 4, 8, 12, 16, 20, 24, 28
S_WS = 32
S_P0 = 34
S_WV, S_ROT, S_NT, S_T0, S_T1, S_T2 = 46, 47, 48, 49, 50, 51
S_XST, S_WDST, S_AOFF, S_OOFF, S_ISV = 52, 53, 54, 56, 57
S_SSRC, S_STG, S_SOOFF, S_SSTR, S_XOFF, S_XNOFF = 58, 59, 60, 61, 62, 63
S_T3, S_T4 = 64, 65
S_KJ = {0: 94, 4: 95}
S_MT, S_PFA, S_PFW = 55, 84, 85
S_CJ = {0: 88, 4: 89}

V_L16 = 1
V_DW, V_DA, V_AR = 2, 4, 8
V_TR = [[10, 11], [12, 13]]
V_LT = 14
V_T0, V_T1, V_T2, V_T3 = 14, 15, 16, 17
V_LN = 0
V_X = 19
V_X = 20
V_PK = 28
V_WF = 44
V_A = 64
V_ACC = 192


def gen_kv_kernel(a, name="kv_kernel", opts=None):
    o = dict(stamp=False, D=5, st="", starts=(0, 4, 20, 36), lnstart=36, pace=6, rot=True, fast=48)
    if opts:
        o.update(opts)
    ST = o["st"]
    D = o["D"]
    st0 = o["starts"]
    blocks = []
    for tau in range(st0[3] + 16):
        for q in range(4):
            if 0 <= tau - st0[q] < 16:
                blocks.append((q, tau - st0[q]))
    assert len(blocks) == 64
    quads = []
    for Q in range(16):
        b = blocks[4 * Q:4 * Q + 4]
        if b[1][0] == b[0][0]:
            assert all(b[j] == (b[0][0], b[0][1] + j) for j in range(4))
            pat = 0
        else:
            pat = b[0][1] - b[1][1]
            assert pat == 4
            assert b[1][0] == b[0][0] + 1 and b[2] == (b[0][0], b[0][1] + 1) and b[3] == (b[1][0], b[1][1] + 1)
        quads.append((b[0][0], b[0][1], pat))
    seq = []
    for Q in range(14):
        for j in range(4):
            for ntl in range(4):
                seq.append((Q, j, ntl) + blocks[4 * Q + j])
    for ntl in range(4):
        for Q in (14, 15):
            for j in range(4):
                seq.append((Q, j, ntl) + blocks[4 * Q + j])
    N = len(seq)
    first_use = {}; qfirst = {}
    for i, s in enumerate(seq):
        first_use.setdefault(s[4] >> 1, i)
        qfirst.setdefault(s[0], i)

    kernel_begin(a, name)
    lend = name + "_end"
    a.e("s_cmp_ge_u32 s2, 256")
    a.e(f"s_cbranch_scc1 {lend}")
    a.e(f"s_load_dwordx4 {sr(S_P0+2,4)}, s[0:1], 0")
    a.e(f"s_load_dwordx4 {sr(S_P0+6,4)}, s[0:1], 24")
    a.e(f"s_load_dwordx2 {sr(S_WS,2)}, s[0:1], 96")
    a.e(f"s_load_dwordx2 {sr(S_P0,2)}, s[0:1], 40")
    a.e(f"s_load_dwordx2 {sr(S_P0+10,2)}, s[0:1], 72")
    if o["stamp"]:
        stamp_begin(a)
    a.e(f"v_lshrrev_b32 v{V_T0}, 6, v0")
    a.e(f"v_and_b32 v{V_LN}, 63, v0")
    a.e(f"v_readfirstlane_b32 s{S_WV}, v{V_T0}")
    a.e(f"v_lshlrev_b32 v{V_L16}, 4, v{V_LN}")
    a.e(f"s_lshr_b32 s{S_T2}, s2, 5")
    a.e(f"s_mov_b32 s{S_MT}, s{S_T2}")
    a.e(f"s_bfe_u32 s{S_ISV}, s2, 0x10004")
    a.e(f"s_and_b32 s{S_T0}, s2, 7")
    a.e(f"s_lshl_b32 s{S_T0}, s{S_T0}, 1")
    a.e(f"s_bfe_u32 s{S_T1}, s2, 0x10003")
    a.e(f"s_add_u32 s{S_NT}, s{S_T0}, s{S_T1}")
    if o["rot"]:
        a.e(f"s_bfe_u32 s{S_ROT}, s2, 0x20003")
        a.e(f"s_lshl_b32 s{S_ROT}, s{S_ROT}, 1")
        a.e(f"s_add_u32 s{S_ROT}, s{S_ROT}, s{S_T2}")
        a.e(f"s_and_b32 s{S_ROT}, s{S_ROT}, 7")
    else:
        a.e(f"s_mov_b32 s{S_ROT}, 0")
    a.e(f"v_lshrrev_b32 v{V_T0}, 3, v{V_LN}")
    a.e(f"v_lshrrev_b32 v{V_T1}, 4, v{V_LN}")
    a.e(f"v_and_b32 v{V_T2}, 7, v{V_LN}")
    a.e(f"v_xor_b32 v{V_T2}, v{V_T2}, v{V_T1}")
    a.e(f"v_lshlrev_b32 v{V_T2}, 4, v{V_T2}")
    a.e(f"v_lshl_add_u32 v{V_DA}, v{V_T0}, 10, v{V_T2}")
    a.e(f"v_xor_b32 v{V_T0}, 64, v{V_DA}")
    a.e(f"v_add_u32 v{V_DA+1}, {8192-1024}, v{V_T0}")
    a.e(f"v_add_u32 v{V_DA+2}, {2*(8192-1024)}, v{V_DA}")
    a.e(f"v_add_u32 v{V_DA+3}, {3*(8192-1024)}, v{V_T0}")
    CB, R4 = V_X, V_X + 1
    a.e(f"v_bfe_u32 v{V_T0}, v{V_LN}, 4, 1")
    a.e(f"v_bfe_u32 v{V_T1}, v{V_LN}, 2, 2")
    a.e(f"v_bfe_u32 v{V_T2}, v{V_LN}, 1, 1")
    a.e(f"v_xor_b32 v{V_T2}, v{V_T2}, v{V_T0}")
    a.e(f"v_and_b32 v{V_T3}, 1, v{V_LN}")
    a.e(f"v_lshl_add_u32 v{V_T2}, v{V_T2}, 1, v{V_T3}")
    a.e(f"v_lshrrev_b32 v{V_T3}, 5, v{V_LN}")
    a.e(f"v_lshl_add_u32 v{V_T2}, v{V_T3}, 2, v{V_T2}")
    a.e(f"v_lshlrev_b32 v{CB}, 4, v{V_T2}")
    a.e(f"v_lshl_add_u32 v{V_T3}, v{V_T0}, 3, v{V_T1}")
    a.e(f"v_lshl_add_u32 v{V_DW}, v{V_T3}, 13, v{CB}")
    a.e(f"v_add_u32 v{V_DW+1}, {16*8192 - 1024}, v{V_DW}")
    a.e(f"v_lshl_add_u32 v{R4}, v{V_T0}, 2, v{V_T1}")
    a.e(f"s_lshr_b32 s{S_T0}, s{S_WV}, 1")
    a.e(f"s_lshl_b32 s{S_T1}, s{S_ROT}, 1")
    a.e(f"s_add_u32 s{S_KJ[0]}, s{S_T0}, s{S_T1}")
    a.e(f"s_and_b32 s{S_T3}, s{S_WV}, 1")
    a.e(f"s_lshl_b32 s{S_T3}, s{S_T3}, 15")
    a.e(f"s_lshl_b32 s{S_CJ[0]}, s{S_NT}, 9")
    a.e(f"s_add_u32 s{S_CJ[0]}, s{S_CJ[0]}, s{S_T3}")
    a.e(f"s_lshl_b32 s{S_WDST}, s{S_WV}, 11")
    a.e(f"s_lshl_b32 s{S_STG}, s{S_WV}, 13")
    a.e(f"s_add_u32 s{S_STG}, s{S_STG}, {LDS_ST}")
    a.e(f"s_lshl_b32 s{S_AOFF}, s{S_T2}, 3")
    a.e(f"s_add_u32 s{S_AOFF}, s{S_AOFF}, s{S_WV}")
    a.e(f"s_lshl_b32 s{S_OOFF}, s{S_AOFF}, 13")
    a.e(f"s_lshl_b32 s{S_AOFF}, s{S_AOFF}, 15")
    a.e("s_waitcnt lgkmcnt(0)")
    srd_from(a, S_CKV, S_P0 + 4, size=2048 * 1024)
    a.e(f"s_cmp_eq_u32 s{S_ISV}, 0")
    a.e(f"s_cselect_b32 s{S_T3}, s{S_P0+6}, s{S_P0+8}")
    a.e(f"s_cselect_b32 s{S_T4}, s{S_P0+7}, s{S_P0+9}")

    def dma_w(Q):
        q0, ks0, pat = quads[Q]
        return [([f"s_add_u32 s{S_T0}, s{S_KJ[pat]}, {ks0}",
                  f"s_and_b32 s{S_T0}, s{S_T0}, 15",
                  f"s_lshl_b32 s{S_T0}, s{S_T0}, 18",
                  f"s_add_u32 s{S_T0}, s{S_T0}, s{S_CJ[pat]}",
                  f"s_add_u32 m0, s{S_WDST}, {(Q % NSLOT)*SLOT}",
                  f"s_add_u32 s{S_T0}, s{S_T0}, {q0*128}",
                  f"buffer_load_dwordx4 v{V_DW}, {sr(S_W,4)}, s{S_T0} offen lds"], ("W", Q)),
                ([f"buffer_load_dwordx4 v{V_DW+1}, {sr(S_W,4)}, s{S_T0} offen offset:1024 lds"], ("W", Q))]
    abuf = {0: 0, 1: 1, 2: None, 3: 0, 4: 1, 5: 0, 6: 1, 7: 0}
    def dma_a(c):
        ops = []
        for rg in range(4):
            op = []
            if rg == 0:
                op += [f"s_add_u32 s{S_T0}, s{S_ROT}, {c}",
                       f"s_and_b32 s{S_T0}, s{S_T0}, 7",
                       f"s_lshl_b32 s{S_T0}, s{S_T0}, 7"]
                op.append(f"s_mov_b32 m0, s{S_XST}" if abuf[c] is None else f"s_add_u32 m0, s{S_STG}, {abuf[c]*4096}")
                op.append(f"s_add_u32 s{S_T0}, s{S_T0}, s{S_AOFF}")
            op.append(f"buffer_load_dwordx4 v{V_DA+rg}, {sr(S_CKV,4)}, s{S_T0} offen offset:{rg*1024} lds")
            ops.append((op, ("A", c)))
        return ops
    def emit_now(ops):
        for op, tag in ops:
            for s in op:
                a.e(s)
    pre = []
    x = dma_a(0); emit_now(x); pre += x
    srd_from(a, S_W, S_T3, size=512 * 8192)
    x = dma_w(0); emit_now(x); pre += x
    PFD = V_PK + 8
    if o.get("pf"):
        a.e(f"s_bfe_u32 s{S_T2}, s2, 0x20003")
        a.e(f"s_lshl_b32 s{S_PFA}, s{S_MT}, 2")
        a.e(f"s_add_u32 s{S_PFA}, s{S_PFA}, s{S_T2}")
        a.e(f"s_lshl_b32 s{S_PFA}, s{S_PFA}, 16")
        a.e(f"s_lshl_b32 s{S_T2}, s{S_WV}, 7")
        a.e(f"s_add_u32 s{S_PFA}, s{S_PFA}, s{S_T2}")
        a.e(f"v_lshlrev_b32 v{PFD+2}, 10, v{V_LN}")
        a.e(f"s_lshl_b32 s{S_PFW}, s{S_MT}, 1")
        a.e(f"s_add_u32 s{S_PFW}, s{S_PFW}, s{S_WV}")
        a.e(f"s_lshl_b32 s{S_PFW}, s{S_PFW}, 18")
        a.e(f"s_lshl_b32 s{S_T2}, s{S_NT}, 9")
        a.e(f"s_add_u32 s{S_PFW}, s{S_PFW}, s{S_T2}")
        a.e(f"s_cmp_lt_u32 s{S_WV}, 2")
        a.e(f"s_cselect_b32 s{S_PFW}, s{S_PFW}, 0x40000000")
        a.e(f"v_lshrrev_b32 v{PFD+3}, 1, v{V_LN}")
        a.e(f"v_and_b32 v{PFD+4}, 1, v{V_LN}")
        a.e(f"v_lshlrev_b32 v{PFD+4}, 7, v{PFD+4}")
        a.e(f"v_lshl_add_u32 v{PFD+3}, v{PFD+3}, 13, v{PFD+4}")
        x = [([f"buffer_load_dword v{PFD}, v{PFD+2}, {sr(S_CKV,4)}, s{S_PFA} offen"], "P"),
             ([f"buffer_load_dword v{PFD+1}, v{PFD+3}, {sr(S_W,4)}, s{S_PFW} offen"], "P")]
        emit_now(x); pre += x
    a.e(f"s_lshr_b32 s{S_T2}, s{S_WV}, 2")
    a.e(f"s_add_u32 s{S_KJ[4]}, s{S_T2}, s{S_T1}")
    a.e(f"s_bfe_u32 s{S_T2}, s{S_WV}, 0x10001")
    a.e(f"s_mul_i32 s{S_T3}, s{S_T2}, 12")
    a.e(f"s_add_u32 s{S_KJ[4]}, s{S_KJ[4]}, s{S_T3}")
    a.e(f"s_lshl_b32 s{S_T2}, s{S_T2}, 7")
    a.e(f"s_add_u32 s{S_CJ[4]}, s{S_CJ[0]}, s{S_T2}")
    a.e(f"s_lshl_b32 s{S_XST}, s{S_WV}, 12")
    a.e(f"s_add_u32 s{S_XST}, s{S_XST}, {LDS_X}")
    x = dma_a(1); emit_now(x); pre += x
    AX = V_PK
    a.e(f"v_and_b32 v{V_T0}, 15, v{V_LN}")
    a.e(f"v_lshrrev_b32 v{V_T1}, 4, v{V_LN}")
    a.e(f"v_lshrrev_b32 v{V_T2}, 1, v{V_T0}")
    a.e(f"v_xor_b32 v{V_T1}, v{V_T1}, v{V_T2}")
    a.e(f"v_lshlrev_b32 v{V_T1}, 4, v{V_T1}")
    a.e(f"v_lshl_add_u32 v{V_T0}, v{V_T0}, 7, v{V_T1}")
    a.e(f"v_add_u32 v{V_AR}, s{S_STG}, v{V_T0}")
    a.e(f"v_xor_b32 v{V_AR+1}, 64, v{V_AR}")
    a.e(f"v_add_u32 v{AX}, s{S_XST}, v{V_T0}")
    a.e(f"v_xor_b32 v{AX+1}, 64, v{AX}")
    a.e(f"v_lshrrev_b32 v{V_T0}, 5, v{V_LN}")
    a.e(f"v_bfe_u32 v{V_T1}, v{V_LN}, 2, 3")
    a.e(f"v_lshlrev_b32 v{V_T1}, 6, v{V_T1}")
    a.e(f"v_lshl_add_u32 v{V_T0}, v{V_T0}, 10, v{V_T1}")
    a.e(f"v_bfe_u32 v{V_T1}, v{V_LN}, 4, 1")
    a.e(f"v_lshl_add_u32 v{V_T0}, v{V_T1}, 5, v{V_T0}")
    a.e(f"v_and_b32 v{V_T1}, 3, v{V_LN}")
    a.e(f"v_lshl_add_u32 v{V_TR[0][0]}, v{V_T1}, 3, v{V_T0}")
    a.e(f"v_xor_b32 v{V_TR[0][1]}, 32, v{V_TR[0][0]}")
    a.e(f"v_add_u32 v{V_TR[1][0]}, 49152, v{V_TR[0][0]}")
    a.e(f"v_add_u32 v{V_TR[1][1]}, 49152, v{V_TR[0][1]}")
    DS = V_PK + 4
    a.e(f"v_mul_u32_u24 v{DS}, 1280, v{R4}")
    a.e(f"v_add_u32 v{DS}, v{DS}, v{CB}")
    for hp in range(1, 4):
        a.e(f"v_add_u32 v{DS+hp}, {hp*(8*1280 - 1024)}, v{DS}")
    x = dma_a(2) + dma_w(1); emit_now(x); pre += x
    a.e(f"s_lshl_b32 s{S_T0}, s{S_NT}, 20")
    a.e(f"s_add_u32 s{S_OOFF}, s{S_OOFF}, s{S_T0}")
    a.e(f"v_cmp_gt_u32 vcc, 16, v{V_LN}")
    a.e(f"s_lshl_b32 s{S_T1}, s{S_ISV}, 24")
    srd_from(a, S_OUT, S_WS, WS_KF, S_T1, 16 << 20)
    srd_from(a, S_X, S_P0 + 2, size=2048 * 1280)
    srd_from(a, S_XN, S_WS, WS_XN, None, 2048 * 1280)
    a.e(f"s_lshl_b32 s{S_T0}, s2, 3")
    a.e(f"s_add_u32 s{S_T0}, s{S_T0}, s{S_WV}")
    a.e(f"s_mul_i32 s{S_XOFF}, s{S_T0}, 1280")
    a.e(f"s_lshr_b32 s{S_T1}, s{S_T0}, 4")
    a.e(f"s_mul_i32 s{S_XNOFF}, s{S_T1}, 20480")
    a.e(f"s_and_b32 s{S_T1}, s{S_T0}, 15")
    a.e(f"s_lshl_b32 s{S_T1}, s{S_T1}, 4")
    a.e(f"s_add_u32 s{S_XNOFF}, s{S_XNOFF}, s{S_T1}")
    a.e(f"s_mul_i32 s{S_T1}, s{S_T0}, 6554")
    a.e(f"s_lshr_b32 s{S_T1}, s{S_T1}, 16")
    a.e(f"s_mul_i32 s{S_T2}, s{S_T1}, 10")
    a.e(f"s_sub_u32 s{S_T0}, s{S_T0}, s{S_T2}")
    a.e(f"s_cmp_lt_u32 s{S_T1}, 128")
    a.e(f"s_cselect_b32 s{S_T3}, s{S_P0}, s{S_P0+10}")
    a.e(f"s_cselect_b32 s{S_T4}, s{S_P0+1}, s{S_P0+11}")
    a.e(f"s_mov_b32 s{S_T2}, {4096*1280}")
    a.e(f"s_cselect_b32 s{S_T2}, s{S_T2}, {1728*1280}")
    a.e(f"s_mov_b32 s{S_SSTR}, {128*1024}")
    a.e(f"s_cselect_b32 s{S_SSTR}, s{S_SSTR}, {54*1024}")
    a.e(f"s_cselect_b32 s{S_SOOFF}, 0, {WS_W2F - WS_WOF}")
    a.e(f"s_cmp_lt_u32 s{S_T1}, 182")
    a.e(f"s_cselect_b32 s{S_T2}, s{S_T2}, 0")
    srd_from(a, S_SIDE, S_T3, size=0)
    a.e(f"s_mov_b32 s{S_SIDE+2}, s{S_T2}")
    srd_from(a, S_SOUT, S_WS, WS_WOF, S_SOOFF, 0)
    a.e(f"s_mov_b32 s{S_SOUT+2}, s{S_T2}")
    a.e(f"s_and_b32 s{S_T1}, s{S_T1}, 127")
    a.e(f"s_mul_i32 s{S_SSRC}, s{S_T1}, 40960")
    a.e(f"s_lshl_b32 s{S_T2}, s{S_T0}, 7")
    a.e(f"s_add_u32 s{S_SSRC}, s{S_SSRC}, s{S_T2}")
    a.e(f"s_mul_i32 s{S_SOOFF}, s{S_T0}, s{S_SSTR}")
    a.e(f"s_lshl_b32 s{S_SOOFF}, s{S_SOOFF}, 2")
    a.e(f"s_lshl_b32 s{S_T1}, s{S_T1}, 10")
    a.e(f"s_add_u32 s{S_SOOFF}, s{S_SOOFF}, s{S_T1}")

    def side_loads():
        ops = []
        for hp in range(4):
            op = [f"s_add_u32 m0, s{S_STG}, 4096", "s_nop 0"] if hp == 0 else []
            op.append(f"buffer_load_dwordx4 v{DS+hp}, {sr(S_SIDE,4)}, s{S_SSRC} offen offset:{hp*1024} lds")
            ops.append((op, "S"))
        return ops

    def body(isv):
        vq = OpQ(); lq = OpQ()
        for op, tag in pre:
            vq.issue(tag)
        cur = []; pend = []
        def emit_one():
            if not cur:
                if not pend:
                    return False
                pend.sort(key=lambda x: x[0])
                cur.extend(pend.pop(0)[1])
            op, tag = cur.pop(0)
            if not (o.get("nodma") and tag[0] in o["nodma"]):
                for s in op:
                    a.e(s)
                vq.issue(tag)
            return True
        def vwait(tag):
            while any(t == tag for _, t in cur) or any(t == tag for _, g in pend for _, t in g):
                emit_one()
            w = vq.need(tag)
            if w is not None:
                a.e(f"s_waitcnt vmcnt({w})")
        def lwait(tag):
            w = lq.need(tag)
            if w is not None:
                a.e(f"s_waitcnt lgkmcnt({min(w, 15)})")
        def rd(i):
            Q, j, ntl, q, ks = seq[i]
            f = V_WF + 4 * (i % D)
            base = (Q % NSLOT) * SLOT + j * 4096 + (ntl >> 1) * 512
            win = 1 if base >= 49152 else 0
            for h in range(2):
                a.e(f"ds_read_b64_tr_b16 {vr(f+2*h,2)}, v{V_TR[win][ntl&1]} offset:{base + h*2048 - win*49152}")
                lq.issue(i)
        def rd_act(c, e_):
            if e_ == 0:
                vwait(("A", c))
            for t in range(2):
                r = V_A + ((2 * c + e_) * 2 + t) * 4
                if abuf[c] is None:
                    a.e(f"ds_read_b128 {vr(r,4)}, v{AX+e_} offset:{t*2048}")
                else:
                    a.e(f"ds_read_b128 {vr(r,4)}, v{V_AR+e_} offset:{abuf[c]*4096 + t*2048}")
                lq.issue(("A", c, e_))
        units = []
        stq = []
        npk = [0]
        tmp_busy = [False] * 4
        def out_unit(q, j, i):
            acc = V_ACC + (q & 1) * 32
            if isv:
                s0 = acc + j * 4; s1 = s0 + 16
                off = (q >> 1) * (1 << 19) + ((q & 1) * 4 + j) * 1024
            else:
                sp, t = j >> 1, j & 1
                s0 = acc + (t * 4 + 2 * sp) * 4; s1 = s0 + 4
                off = (q >> 1) * (1 << 19) + (t * 4 + (q & 1) * 2 + sp) * 1024
            tix = npk[0] & 3; npk[0] += 1
            dst = V_PK + 4 * tix
            muls = [] if (isv or not o.get("kscale", True)) else [f"v_mul_f32 v{r}, {QSCALE!r}, v{r}" for r in list(range(s0, s0 + 4)) + list(range(s1, s1 + 4))]
            units.append([i + 2, muls + [f"v_cvt_pk_bf16_f32 v{dst}, v{s0}, v{s0+1}",
                                  f"v_cvt_pk_bf16_f32 v{dst+1}, v{s0+2}, v{s0+3}",
                                  f"v_cvt_pk_bf16_f32 v{dst+2}, v{s1}, v{s1+1}",
                                  f"v_cvt_pk_bf16_f32 v{dst+3}, v{s1+2}, v{s1+3}"],
                          [f"s_add_u32 s{S_T3}, s{S_OOFF}, {off}",
                           f"buffer_store_dwordx4 {vr(dst,4)}, v{V_L16}, {sr(S_OUT,4)}, s{S_T3} offen{ST}"], tix, False])
        last_store = [-100]
        def cvt_step(i, n):
            while n > 0 and units and units[0][0] <= i:
                u = units[0]
                if not u[4]:
                    if tmp_busy[u[3]]:
                        return
                    tmp_busy[u[3]] = True; u[4] = True
                a.e(u[1].pop(0)); n -= 1
                if not u[1]:
                    stq.append((i + 1, u[2], None, u[3]))
                    units.pop(0)
        def store_step(i, pace):
            if stq and stq[0][0] <= i and i - last_store[0] >= pace:
                _, ins, tag, tix = stq.pop(0)
                if tag is not None:
                    lwait(tag)
                for s_ in ins:
                    a.e(s_)
                vq.issue("O")
                if tix is not None:
                    tmp_busy[tix] = False
                last_store[0] = i
        ln = ln_list(V_X, V_LT) if not o.get("noln") else []
        XO, XO2 = V_LT, V_LT + 1
        ln += [f"v_lshrrev_b32 v{V_LT+2}, 2, v{V_LN}",
               f"v_and_b32 v{V_LT+3}, 3, v{V_LN}",
               f"v_lshlrev_b32 v{V_LT+3}, 8, v{V_LT+3}",
               f"v_lshl_add_u32 v{XO}, v{V_LT+2}, 10, v{V_LT+3}",
               f"v_mov_b32 v{V_LT+2}, 0x40000000",
               f"v_add_u32 v{V_LT+3}, 16384, v{XO}",
               f"v_cndmask_b32 v{XO2}, v{V_LT+2}, v{V_LT+3}, vcc"]
        ln_started = False
        nrd = 0
        act_at = {}
        for c in range(1, 8):
            for e_ in range(2):
                act_at[first_use[c] - D - 1 + e_] = (c, e_)
        side_rd = o.get("siderd", 164)
        SF = V_ACC + 32
        if o.get("pf"):
            pend.append((o.get("pf2", 40), [([f"buffer_load_dword v{PFD+1}, v{PFD+3}, {sr(S_W,4)}, s{S_PFW} offen offset:256"], "P")]))
        pend.append((32, dma_w(2)))
        pend.append((48, dma_w(3)))
        pend.append((o["lnstart"] - 30, [([f"buffer_load_dwordx4 {vr(V_X+4*h,4)}, v{V_L16}, {sr(S_X,4)}, s{S_XOFF} offen offset:{h*1024}"], "X") for h in range(2)]))
        if o["lnstart"] < 16:
            emit_one(); emit_one()
        rd_act(0, 0); rd_act(0, 1)
        stq_marks = (0, 1, 2, 4, 6, 8, 10, 12)
        for i, (Q, j, ntl, q, ks) in enumerate(seq):
            while nrd < min(N, i + D):
                Q2 = seq[nrd][0]
                if nrd == qfirst[Q2] and Q2 < 15:
                    vwait(("W", 15 if Q2 == 14 else Q2))
                    a.e("s_barrier")
                    if o["stamp"] and Q2 in stq_marks:
                        stamp_mid(a, stq_marks.index(Q2)); lq.drain()
                    if Q2 == 2:
                        pend.append((64, dma_w(4))); pend.append((80, dma_w(5)))
                    if Q2 >= 2 and Q2 + 4 < 16:
                        pend.append((qfirst[Q2 + 4], dma_w(Q2 + 4)))
                rd(nrd); nrd += 1
            if i in act_at:
                rd_act(*act_at[i])
            c = ks >> 1
            lwait(("A", c, ks & 1))
            if i == first_use[c]:
                lwait(("A", c, 1))
                nc = {0: 3, 1: 4, 3: 5, 4: 6, 5: 7}.get(c)
                if nc:
                    pend.append((first_use[nc], dma_a(nc)))
                if c == 6:
                    pend.append((100, side_loads()))
            lwait(i)
            f = V_WF + 4 * (i % D)
            for t in range(2):
                d = V_ACC + (q & 1) * 32 + (t * 4 + ntl) * 4
                x = V_A + (ks * 2 + t) * 4
                cc = d if ks > 0 else "0"
                if ks == 0:
                    assert not any((f", v{d}," in s_ or f", v{d+2}," in s_ or s_.endswith(f", v{d+3}")) for u in units for s_ in u[1]), (i, d)
                    assert not any(f"v[{d}:" in s_ for st_ in stq for s_ in st_[1]), (i, d)
                a.e(MF(d, x, f, cc) if isv else MF(d, f, x, cc))
                if t == 0:
                    if units:
                        assert not any(tg == "S" for _, tg in cur) and not any(tg == "S" for _, g in pend for _, tg in g)
                    cvt_step(i, 2 if isv else 4)
                elif i >= o["lnstart"] and ln:
                    if not ln_started:
                        vwait("X")
                        ln_started = True
                    for _ in range(o.get("lnrate", 2)):
                        s_ = ln.pop(0)
                        a.e(s_)
                        if not ln or any(k in ln[0] for k in ("dpp", "permlane")) or any(k in s_ for k in ("sqrt", "rcp", "permlane")):
                            break
                    if not ln:
                        for h in range(2):
                            stq.append((i + 1, [f"buffer_store_dwordx4 {vr(V_X+4*h,4)}, v{XO2 if h else XO}, {sr(S_XN,4)}, s{S_XNOFF} offen{ST}"], None, None))
            if ks == 15:
                if isv:
                    out_unit(q, ntl, i)
                elif ntl & 1:
                    for t in range(2):
                        out_unit(q, (ntl >> 1) * 2 + t, i)
            if i % 2 == 0 or i < o["fast"]:
                emit_one()
            store_step(i, o["pace"])
            if i == side_rd:
                assert not ln
                assert not any(u[0] <= i for u in units)
                vwait("S")
                a.e(f"s_add_u32 s{S_T1}, s{S_STG}, 4096")
                a.e(f"v_add_u32 v{V_LT+2}, s{S_T1}, v{V_TR[0][0]}")
                a.e(f"v_add_u32 v{V_LT+3}, s{S_T1}, v{V_TR[0][1]}")
            if side_rd < i <= side_rd + 4:
                s_ = i - side_rd - 1
                for h in range(2):
                    a.e(f"ds_read_b64_tr_b16 {vr(SF+4*s_+2*h,2)}, v{V_LT+2+(s_&1)} offset:{h*2048 + (s_>>1)*512}")
                    lq.issue(("T", s_))
                stq.append((i + 4, [f"buffer_store_dwordx4 {vr(SF+4*s_,4)}, v{V_L16}, {sr(S_SOUT,4)}, s{S_SOOFF} offen{ST}",
                                    f"s_add_u32 s{S_SOOFF}, s{S_SOOFF}, s{S_SSTR}"], ("T", s_), None))
        assert not ln and not pend and not cur
        if o["stamp"]:
            stamp_mid(a, 8)
        a.e("s_nop 7")
        k = N + 10
        while units or stq:
            store_step(k, 0)
            cvt_step(k, 4)
            k += 1

    lv = name + "_v"; lside = name + "_done"
    a.e(f"s_cmp_eq_u32 s{S_ISV}, 1")
    a.e(f"s_cbranch_scc1 {lv}")
    body(False)
    a.e(f"s_branch {lside}")
    a.label(lv)
    body(True)
    a.label(lside)
    if o["stamp"]:
        a.e("s_waitcnt vmcnt(0)")
        stamp_end(a, S_WS, S_WV, 0)
        stamp_dump(a, 9)
    a.label(lend)
    a.e("s_endpgm")
    kernel_desc(a, name, 256, 102)


if __name__ == "__main__":
    variants = {"kv": {}, "kv_pf": dict(rot=False, pf=1), "kv_ln": dict(lnstart=4, lnrate=6), "kv_pfln": dict(rot=False, pf=1, lnstart=4, lnrate=6),
                "kv_pfln4": dict(rot=False, pf=1, lnstart=8, lnrate=4), "kv_rotpf": dict(rot=True, pf=1, lnstart=4, lnrate=6)}
    for n, v in variants.items():
        a = Asm()
        a.raw(f"; @launch kernel=kv_kernel grid=(256,1,1) block=({KV_THREADS},1,1) lds={KV_LDS}")
        a.raw('.amdgcn_target "amdgcn-amd-amdhsa--gfx950"')
        gen_kv_kernel(a, opts=dict(stamp=True, **v))
        open(n + ".s", "w").write(a.text())
    import tarfile
    with tarfile.open("kv_all.tgz", "w:gz") as t:
        for n in variants: t.add(n + ".s")
```

```python
import math
from common import OpQ, srd_from, MF
from gen_at2 import *

S_WQ, S_W1, S_B1, S_ACT = 60, 64, 68, 72
S_XNS = S_QSRD
S_QSRC, S_QDST, S_1SRC, S_1DST = 58, 59, 100, 101
S_X0, S_X1, S_AO, S_P0 = S_CNT, S_D, S_XOUT, S_XIN
V_DQ0, V_DQ1, V_D1 = 10, 11, 12
V_PTR = [[20, 21], [22, 23], [24, 25]]
V_BO = 26
V_XW = 27
P_ACC = 128
P_HACC = 192
P_XN = 32
NXR = 12
P_WF = 224
P_TMP = 248
LOG2E = math.log2(math.e)
QSCALE = LOG2E / math.sqrt(128.0)
LDS_XCH = LDS_V + 32768


class Prologue:
    def __init__(self, a, g, name, attn_setup):
        self.a = a; self.g = g; self.name = name; self.attn_setup = attn_setup

    def emit(self):
        a = self.a; g = self.g; o = g.o; name = self.name
        PD = 6
        ST = o["st"]
        LN = V_T1
        A, B, C = V_T0, V_T2, V_T3
        a.e(f"s_cmp_eq_u32 s{S_G}, 0")
        a.e(f"s_cselect_b32 s{S_T1}, s{S_QB}, s{S_PAIR}")
        a.e(f"s_lshl_b32 s{S_T1}, s{S_T1}, 2")
        a.e(f"s_add_u32 s{S_AO}, s{S_T1}, s{S_W}")
        a.e(f"s_mul_i32 s{S_X0}, s{S_AO}, 40960")
        a.e(f"s_add_u32 s{S_X1}, s{S_X0}, 20480")
        a.e(f"s_lshl_b32 s{S_QSRC}, s{S_G}, 18")
        a.e(f"s_lshl_b32 s{S_T1}, s{S_HEAD}, 8")
        a.e(f"s_add_u32 s{S_QSRC}, s{S_QSRC}, s{S_T1}")
        a.e(f"s_bfe_u32 s{S_T1}, s{S_WV}, 0x10001")
        a.e(f"s_lshl_b32 s{S_T1}, s{S_T1}, 7")
        a.e(f"s_add_u32 s{S_QSRC}, s{S_QSRC}, s{S_T1}")
        a.e(f"s_and_b32 s{S_T1}, s{S_WV}, 1")
        a.e(f"s_lshl_b32 s{S_T3}, s{S_T1}, 15")
        a.e(f"s_add_u32 s{S_QSRC}, s{S_QSRC}, s{S_T3}")
        a.e(f"s_mul_i32 s{S_1DST}, s{S_G}, 12288")
        a.e(f"s_lshl_b32 s{S_T3}, s{S_W}, 11")
        a.e(f"s_add_u32 s{S_QDST}, s{S_1DST}, s{S_T3}")
        a.e(f"s_lshl_b32 s{S_T3}, s{S_W}, 10")
        a.e(f"s_add_u32 s{S_1DST}, s{S_1DST}, s{S_T3}")
        a.e(f"s_lshl_b32 s{S_1SRC}, s{S_G}, 5")
        a.e(f"s_lshl_b32 s{S_T1}, s{S_T1}, 4")
        a.e(f"s_add_u32 s{S_1SRC}, s{S_1SRC}, s{S_T1}")
        a.e(f"s_lshr_b32 s{S_T1}, s{S_W}, 1")
        a.e(f"s_lshl_b32 s{S_T1}, s{S_T1}, 2")
        a.e(f"s_add_u32 s{S_1SRC}, s{S_1SRC}, s{S_T1}")
        a.e(f"s_mul_i32 s{S_1SRC}, s{S_1SRC}, 3456")
        a.e(f"s_lshl_b32 s{S_T3}, s{S_HEAD}, 7")
        a.e(f"s_add_u32 s{S_1SRC}, s{S_1SRC}, s{S_T3}")
        a.e(f"v_bfe_u32 v{A}, v{LN}, 4, 1")
        a.e(f"v_bfe_u32 v{B}, v{LN}, 1, 1")
        a.e(f"v_xor_b32 v{B}, v{B}, v{A}")
        a.e(f"v_and_b32 v{C}, 1, v{LN}")
        a.e(f"v_lshl_add_u32 v{B}, v{B}, 1, v{C}")
        a.e(f"v_lshrrev_b32 v{C}, 5, v{LN}")
        a.e(f"v_lshl_add_u32 v{B}, v{C}, 2, v{B}")
        a.e(f"v_lshlrev_b32 v{B}, 4, v{B}")
        a.e(f"v_bfe_u32 v{C}, v{LN}, 2, 2")
        a.e(f"v_lshl_add_u32 v{C}, v{A}, 3, v{C}")
        a.e(f"v_lshl_add_u32 v{V_DQ0}, v{C}, 13, v{B}")
        a.e(f"v_add_u32 v{V_DQ1}, {16*8192 - 1024}, v{V_DQ0}")
        a.e(f"v_mul_u32_u24 v{V_D1}, 3456, v{C}")
        a.e(f"v_add_u32 v{V_D1}, v{V_D1}, v{B}")
        a.e(f"v_lshrrev_b32 v{V_BO}, 4, v{LN}")
        a.e(f"v_lshlrev_b32 v{V_BO}, 3, v{V_BO}")
        a.e("s_waitcnt lgkmcnt(0)")
        srd_from(a, S_XNS, S_WS, WS_XN, None, 2048 * 1280)
        a.e(f"s_and_b32 s{S_WQ+1}, s{S_WQ+1}, 0xffff")
        a.e(f"s_mov_b32 s{S_WQ+2}, {640*8192}")
        a.e(f"s_mov_b32 s{S_WQ+3}, 0x20000")
        srd_from(a, S_B1, 66, 0, S_T3, 128)
        a.e(f"s_and_b32 s{S_W1+1}, s{S_W1+1}, 0xffff")
        a.e(f"s_mov_b32 s{S_W1+2}, {640*3456}")
        a.e(f"s_mov_b32 s{S_W1+3}, 0x20000")

        def pst(k):
            a.e(f"s_memtime s[{76+2*k}:{77+2*k}]")
            a.e("s_waitcnt lgkmcnt(0)")

        def late_setup():
            a.e(f"v_lshrrev_b32 v{A}, 5, v{LN}")
            a.e(f"v_bfe_u32 v{B}, v{LN}, 2, 3")
            a.e(f"v_lshlrev_b32 v{B}, 6, v{B}")
            a.e(f"v_lshl_add_u32 v{A}, v{A}, 10, v{B}")
            a.e(f"v_bfe_u32 v{B}, v{LN}, 4, 1")
            a.e(f"v_lshl_add_u32 v{A}, v{B}, 5, v{A}")
            a.e(f"v_and_b32 v{B}, 3, v{LN}")
            a.e(f"v_lshl_add_u32 v{V_PTR[0][0]}, v{B}, 3, v{A}")
            a.e(f"v_xor_b32 v{V_PTR[0][1]}, 32, v{V_PTR[0][0]}")
            for w in (1, 2):
                for e in range(2):
                    a.e(f"v_add_u32 v{V_PTR[w][e]}, {49152*w}, v{V_PTR[0][e]}")
            srd_from(a, S_ACT, S_WS, WS_ACT, None, 128 * 54 * 1024)
            a.e(f"s_mul_i32 s{S_AO}, s{S_AO}, {2*54*1024}")
            a.e(f"s_lshl_b32 s{S_T1}, s{S_HEAD}, 11")
            a.e(f"s_add_u32 s{S_AO}, s{S_AO}, s{S_T1}")
            a.e(f"s_lshl_b32 s{S_P0}, s{S_W}, 13")
            a.e(f"s_add_u32 s{S_T1}, s{S_P0}, {LDS_X}")
            a.e(f"v_add_u32 v{V_XI}, s{S_T1}, v{V_L16}")
            a.e(f"s_add_u32 s{S_P0}, s{S_P0}, {LDS_XCH}")
            a.e(f"v_add_u32 v{V_XO}, s{S_P0}, v{V_L16}")
            a.e(f"s_cmp_eq_u32 s{S_G}, 0")
            a.e(f"s_cselect_b32 s{S_T1}, s{S_P0}, s{S_T1}")
            a.e(f"v_add_u32 v{V_XW}, s{S_T1}, v{V_L16}")
            self.attn_setup()

        def body(has1):
            nst = 10
            def slot(j):
                idx = (j + 60 - (nst - 3)) % 6
                return 81920 + idx * 24576 if idx < 3 else (idx - 3) * 24576
            seq = []
            for ks in range(20):
                j = ks >> 1
                if has1:
                    for n in range(4):
                        seq.append((j, "H", ks, n, slot(j) + (ks & 1) * 12288 + 8192 + (n >> 1) * 512))
                for n in range(8):
                    seq.append((j, "Q", ks, n, slot(j) + (ks & 1) * 12288 + (n >> 2) * 4096 + ((n >> 1) & 1) * 512))
            N = len(seq)
            stage_first = {}; xfirst = {}; xlast = {}
            for i, s in enumerate(seq):
                stage_first.setdefault(s[0], i); xfirst.setdefault(s[2], i); xlast[s[2]] = i
            lastH = max([i for i, s in enumerate(seq) if s[1] == "H"], default=N)
            vq = OpQ(); lq = OpQ()
            cur = []; pend = []
            def dma_st(j):
                ops = [([f"s_add_u32 m0, s{S_QDST}, {slot(j)}",
                         f"s_add_u32 s{S_T0}, s{S_QSRC}, {j*64*8192}",
                         f"buffer_load_dwordx4 v{V_DQ0}, {sr(S_WQ,4)}, s{S_T0} offen lds"], ("W", j)),
                       ([f"buffer_load_dwordx4 v{V_DQ1}, {sr(S_WQ,4)}, s{S_T0} offen offset:1024 lds"], ("W", j))]
                if has1:
                    ops.append(([f"s_add_u32 m0, s{S_1DST}, {slot(j) + 8192}",
                                 f"s_add_u32 s{S_T0}, s{S_1SRC}, {j*64*3456}",
                                 f"buffer_load_dwordx4 v{V_D1}, {sr(S_W1,4)}, s{S_T0} offen lds"], ("W", j)))
                return ops
            def xn_ld(ks):
                ops = []
                for t in range(2):
                    op = [f"buffer_load_dwordx4 {vr(P_XN+(ks%NXR)*8+4*t,4)}, v{V_L16}, {sr(S_XNS,4)}, s{S_X1 if t else S_X0} offen offset:{(ks&3)*1024}"]
                    if ks & 3 == 3:
                        op.append(f"s_add_u32 s{S_X1 if t else S_X0}, s{S_X1 if t else S_X0}, 4096")
                    ops.append((op, ("X", ks)))
                return ops
            def emit_one(i):
                if not cur:
                    elig = [p for p in pend if p[1] <= i]
                    if not elig:
                        return False
                    p = min(elig, key=lambda x: x[0])
                    pend.remove(p)
                    cur.extend(p[2])
                op, tag = cur.pop(0)
                for s in op:
                    a.e(s)
                vq.issue(tag)
                return True
            def vwait(tag, i):
                while any(t == tag for _, t in cur) or any(t == tag for p in pend for _, t in p[2]):
                    assert emit_one(i), tag
                w = vq.need(tag)
                if w is not None:
                    a.e(f"s_waitcnt vmcnt({w})")
            def lwait(tag):
                w = lq.need(tag)
                if w is not None:
                    a.e(f"s_waitcnt lgkmcnt({min(w,15)})")
            def rd(i):
                j, kind, ks, n, off = seq[i]
                f = P_WF + 4 * (i % PD)
                win = min(2, off // 49152)
                for h in range(2):
                    a.e(f"ds_read_b64_tr_b16 {vr(f+2*h,2)}, v{V_PTR[win][n&1]} offset:{off + h*2048 - win*49152}")
                    lq.issue(i)
            for grp in (xn_ld(0), dma_st(0)):
                cur.extend(grp)
                while cur:
                    emit_one(0)
            if has1:
                for n in range(4):
                    a.e(f"buffer_load_dwordx2 {vr(P_TMP+2*n,2)}, v{V_BO}, {sr(S_B1,4)}, 0 offen offset:{n*32}")
                    vq.issue("B")
            cur.extend(xn_ld(1))
            while cur:
                emit_one(0)
            if o.get("pstamp") == 2:
                a.e("s_memtime s[76:77]")
            late_setup()
            for j in range(1, 4):
                pend.append((stage_first[j], 0, dma_st(j)))
            for ks in range(2, 20):
                el = 0 if ks < NXR else xlast[ks - NXR] + 1
                el = max(el, xfirst[ks] - o.get("xla", 72))
                pend.append((xfirst[ks], el, xn_ld(ks)))
            for _ in range(o.get("pre_extra", 7)):
                emit_one(0)
            if o.get("pstamp") == 2:
                a.e("s_memtime s[78:79]")
            if has1:
                vwait("B", 0)
                for n in range(4):
                    for r in range(4):
                        src = P_TMP + 2 * n + (r >> 1)
                        d = P_HACC + n * 4 + r
                        a.e(f"v_and_b32 v{d}, 0xffff0000, v{src}" if r & 1 else f"v_lshlrev_b32 v{d}, 16, v{src}")
            mish = []
            if has1:
                for t in range(2):
                    for cc in range(2):
                        els = [P_HACC + (t * 4 + 2 * cc) * 4 + k for k in range(8)]
                        T = P_TMP
                        mish += [f"v_mul_f32 v{T+k}, {LOG2E!r}, v{h}" for k, h in enumerate(els)]
                        mish += [f"v_exp_f32 v{T+k}, v{T+k}" for k in range(8)]
                        mish += [f"v_add_f32 v{T+k}, 1.0, v{T+k}" for k in range(8)]
                        mish += [f"v_fma_f32 v{T+k}, v{T+k}, v{T+k}, 1.0" for k in range(8)]
                        mish += [f"v_rcp_f32 v{T+k}, v{T+k}" for k in range(8)]
                        mish += [f"v_fma_f32 v{T+k}, v{T+k}, -2.0, 1.0" for k in range(8)]
                        mish += [f"v_mul_f32 v{h}, v{h}, v{T+k}" for k, h in enumerate(els)]
                        dst = els[0]
                        mish += [f"v_cvt_pk_bf16_f32 v{dst+k}, v{els[2*k]}, v{els[2*k+1]}" for k in range(4)]
                        mish += [f"s_add_u32 s{S_T1}, s{S_AO}, {t*54*1024}",
                                 f"buffer_store_dwordx4 {vr(dst,4)}, v{V_L16}, {sr(S_ACT,4)}, s{S_T1} offen offset:{cc*1024}{ST}"]
            nrd = 0
            kv = [g.dma_k(), g.dma_k(), g.dma_v(), g.dma_k(), g.dma_v()]
            marks = (0, 1, 2, 4, 6, 8) if o.get("pstamp") == 1 else ((0, 1, 2, 3) if o.get("pstamp") == 2 else ())
            for i, (j, kind, ks, n, off) in enumerate(seq):
                while nrd < min(N, i + PD - (i & 1)):
                    j2 = seq[nrd][0]
                    if nrd == stage_first[j2]:
                        vwait(("W", j2), i)
                        a.e("s_barrier")
                        if j2 in marks:
                            pst(marks.index(j2) + (2 if o["pstamp"] == 2 else 0)); lq.drain()
                        if j2 + 4 < nst:
                            pend.append((stage_first[j2 + 4], 0, dma_st(j2 + 4)))
                        if j2 == nst - 2:
                            for k, grp in enumerate(kv):
                                pend.append((N + k, 0, [(gg, "KV") for gg in grp]))
                    rd(nrd); nrd += 1
                if i == xfirst[ks]:
                    vwait(("X", ks), i)
                if not i & 1:
                    lwait(i + 1)
                f = P_WF + 4 * (i % PD)
                for t in range(2):
                    x = P_XN + (ks % NXR) * 8 + 4 * t
                    if kind == "H":
                        d = P_HACC + (t * 4 + n) * 4
                        c = d if ks > 0 else P_HACC + n * 4
                        if ks == 0:
                            tt = 1 - t
                            d = P_HACC + (tt * 4 + n) * 4
                            x = P_XN + 4 * tt
                    else:
                        d = P_ACC + (t * 8 + n) * 4
                        c = d if ks > 0 else "0"
                    a.e(MF(d, f, x, c))
                    if i > lastH + 2:
                        for _ in range(o.get("mishrate", 3)):
                            s_ = mish.pop(0)
                            assert not s_.startswith("buffer")
                            a.e(s_)
                emit_one(i)
            while emit_one(N):
                pass
            if o.get("pstamp"):
                pst(6)
            a.e("s_barrier")
            if has1:
                n0 = 24
                for s_ in mish[:n0]:
                    a.e(s_)
                mish = mish[n0:]
            else:
                a.e("s_nop 7")
            for t in range(2):
                for s in range(4):
                    src = P_ACC + (t * 8 + 2 * s) * 4
                    if not o.get("kscale", True):
                        for k in range(8):
                            a.e(f"v_mul_f32 v{src+k}, {QSCALE!r}, v{src+k}")
                    for k in range(4):
                        a.e(f"v_cvt_pk_bf16_f32 v{src+k}, v{src+2*k}, v{src+2*k+1}")
                    a.e(f"ds_write_b128 v{V_XW}, {vr(src,4)} offset:{(t*4+s)*1024}")
            if o.get("pstamp"):
                pst(7)
            for s_ in mish:
                a.e(s_)
            if o.get("pstamp"):
                pst(8)

        l27 = name + "_no1"; ljoin = name + "_pj"
        a.e(f"s_cmp_ge_u32 s{S_HEAD}, 27")
        a.e(f"s_cbranch_scc1 {l27}")
        body(True)
        a.e("s_waitcnt vmcnt(12) lgkmcnt(0)")
        a.e(f"s_branch {ljoin}")
        a.label(l27)
        body(False)
        a.e("s_waitcnt vmcnt(8) lgkmcnt(0)")
        a.label(ljoin)
        a.e("s_barrier")
        if o.get("pstamp"):
            pst(9)
        for s in range(8):
            a.e(f"ds_read_b128 {vr(V_Q+4*s,4)}, v{V_XO} offset:{s*1024}")
```

```python
import sys
from asmlib import *
import gen_kv, gen_at2
HDR = open("recurrent_scan__compressed_kv_cla__dense_activation_mish__prompt.s.ref").read().split("; Override")[0]
def build(path, stamp=False, kvo=None, ato=None, outo=None, which=(1, 1, 1)):
    a = Asm()
    a.raw(HDR.rstrip())
    if which[0]:
        a.raw(f"; @launch kernel=kv_kernel grid=(256,1,1) block=({gen_kv.KV_THREADS},1,1) lds={gen_kv.KV_LDS}")
    if which[1]:
        a.raw(f"; @launch kernel=attn_kernel grid=(256,1,1) block=(512,1,1) lds={gen_at2.LDS_TOTAL}")
    if which[2]:
        import gen_out
        a.raw(f"; @launch kernel=out_kernel grid=({gen_out.OUT_GRID},1,1) block=({gen_out.OUT_THREADS},1,1) lds={gen_out.OUT_LDS}")
    a.raw('.amdgcn_target "amdgcn-amd-amdhsa--gfx950"')
    if which[0]:
        gen_kv.gen_kv_kernel(a, opts=dict(stamp=stamp, **(kvo or {})))
    if which[1]:
        gen_at2.gen_attn_kernel(a, opts=dict(stamp=stamp, **(ato or {})))
    if which[2]:
        gen_out.gen_out_kernel(a, opts=dict(stamp=stamp, **(outo or {})))
    open(path, "w").write(a.text())
OUTO = dict(P=3, xb=1)
if __name__ == "__main__":
    if len(sys.argv) > 1 and sys.argv[1] == "final":
        build("recurrent_scan__compressed_kv_cla__dense_activation_mish__prompt.s", stamp=False, outo=OUTO)
    else:
        build("p123.s", stamp=True, outo=OUTO)
        build("pv_a.s", stamp=True, ato=dict(nodma=1), outo=OUTO)
        build("pv_b.s", stamp=True, ato=dict(novalu=1, msk="0"), outo=OUTO)
        build("pv_c.s", stamp=True, ato=dict(noones=1), outo=OUTO)
        build("pv_d.s", stamp=True, ato=dict(nobar=1), outo=OUTO)
        build("pv_e.s", stamp=True, ato=dict(novalu=2, msk="0"), outo=OUTO)
        build("pv_f.s", stamp=True, ato=dict(novalu=1, msk="0", nodma=1), outo=OUTO)
```

```python
import sys
from gen_all import *
V = {
 "h_sc": dict(kv=dict(st=" sc1"), at=dict(st=" sc1")),
 "h_sc_at": dict(at=dict(st=" sc1")),
 "h_sc_p9": dict(kv=dict(st=" sc1", pace=9), at=dict(st=" sc1")),
}
if __name__ == "__main__":
    for n, v in V.items():
        build("../cdna_kernels/" + n + ".s", stamp=False, kvo=v.get("kv"), ato=v.get("at"), outo=dict(OUTO, **v.get("out", {})))
```
